```python
import torch

def _softmax(x, axis=-1):
    return torch.softmax(x, dim=axis)
def _gelu(x):
    return torch.nn.functional.gelu(x, approximate="tanh")
def _silu(x):
    return torch.nn.functional.silu(x)
def _sigmoid(x):
    return torch.sigmoid(x)
def _layernorm(x, axis=-1, eps=1e-5):
    m = x.mean(dim=axis, keepdim=True)
    v = x.var(dim=axis, keepdim=True, unbiased=False)
    return (x - m) / torch.sqrt(v + eps)
def _scatter_add(tgt, idx, src, axis=0):
    return tgt.clone().index_add_(axis, idx, src)
def _segment_sum(src, seg, n):
    out = torch.zeros((n,) + src.shape[1:], dtype=src.dtype)
    return out.index_add_(0, seg, src)
def _pad(x, pw):
    flat = tuple(v for pair in reversed(pw) for v in pair)
    return torch.nn.functional.pad(x, flat)

kernel_name = 'gated_mix__mha_block_cached__gqa_block_cached__decode'

def setup_inputs():

    _w = (lambda a: (lambda t: t.to(torch.bfloat16) if t.is_floating_point() else t)(torch.as_tensor(a)))
    def _A_setup():
        B, Sq, D = 8, 1, 1024
        H, Sk, Dh = 32, 4096, 128
        return {
            "x": _w((lambda *s: torch.randn(*s, dtype=torch.bfloat16) * 0.05)(B, Sq, D)),
            "k_cache": _w((lambda *s: torch.randn(*s, dtype=torch.bfloat16) * 6.4)(B, H, Sk, Dh)),
            "v_cache": _w((lambda *s: torch.randn(*s, dtype=torch.bfloat16) * 0.05)(B, H, Sk, Dh)),
            "wq": _w((lambda *s: torch.randn(*s, dtype=torch.bfloat16) * 6.4)(D, H * Dh) * (D ** -0.5)),
            "wo": _w((lambda *s: torch.randn(*s, dtype=torch.bfloat16) * 0.05)(H * Dh, D) * ((H * Dh) ** -0.5)),
        }
    _A_in = _A_setup()

    def _B_setup():
        B, Sq, D = 8, 1, 1024
        Hq, Hkv, Sk, Dh = 32, 4, 4096, 128
        assert Hq % Hkv == 0, (Hq, Hkv)
        return {
            "x": _w((lambda *s: torch.randn(*s, dtype=torch.bfloat16) * 0.05)(B, Sq, D)),
            "k_cache": _w((lambda *s: torch.randn(*s, dtype=torch.bfloat16) * 6.4)(B, Hkv, Sk, Dh)),
            "v_cache": _w((lambda *s: torch.randn(*s, dtype=torch.bfloat16) * 0.05)(B, Hkv, Sk, Dh)),
            "wq": _w((lambda *s: torch.randn(*s, dtype=torch.bfloat16) * 6.4)(D, Hq * Dh) * (D ** -0.5)),
            "wo": _w((lambda *s: torch.randn(*s, dtype=torch.bfloat16) * 0.05)(Hq * Dh, D) * ((Hq * Dh) ** -0.5)),
        }
    _B_in = _B_setup()

    return {
        "A_x": _A_in["x"],
        "A_k_cache": _A_in["k_cache"],
        "A_v_cache": _A_in["v_cache"],
        "A_wq": _A_in["wq"],
        "A_wo": _A_in["wo"],
        "B_x": _B_in["x"],
        "B_k_cache": _B_in["k_cache"],
        "B_v_cache": _B_in["v_cache"],
        "B_wq": _B_in["wq"],
        "B_wo": _B_in["wo"],
        "gate_w": _w((lambda *s: torch.randn(*s, dtype=torch.bfloat16) * 0.05)(1024) * 16.0),
    }

def reference(A_x, A_k_cache, A_v_cache, A_wq, A_wo, B_x, B_k_cache, B_v_cache, B_wq, B_wo, gate_w):
    def _A_ref(x, k_cache, v_cache, wq, wo):
        B, Sq, D = x.shape
        H, Dh = 32, 128
        q = (lambda x, *d: x.permute(*d))((x @ wq).reshape(B, Sq, H, Dh), 0, 2, 1, 3)
        scores = torch.einsum("bhqd,bhkd->bhqk", q, k_cache) * (Dh ** -0.5)
        p = _softmax(scores, axis=-1)
        o = torch.einsum("bhqk,bhkd->bhqd", p, v_cache)
        return (lambda x, *d: x.permute(*d))(o, 0, 2, 1, 3).reshape(B, Sq, H * Dh) @ wo

    def _B_ref(x, k_cache, v_cache, wq, wo):
        B, Sq, D = x.shape
        Hq, Dh = 32, 128
        Hkv = k_cache.shape[1]
        rep = Hq // Hkv
        q = (lambda x, *d: x.permute(*d))((x @ wq).reshape(B, Sq, Hq, Dh), 0, 2, 1, 3)
        k = (lambda x, n, axis: torch.repeat_interleave(x, n, dim=axis))(k_cache, rep, axis=1)
        v = (lambda x, n, axis: torch.repeat_interleave(x, n, dim=axis))(v_cache, rep, axis=1)
        scores = torch.einsum("bhqd,bhkd->bhqk", q, k) * (Dh ** -0.5)
        p = _softmax(scores, axis=-1)
        o = torch.einsum("bhqk,bhkd->bhqd", p, v)
        return (lambda x, *d: x.permute(*d))(o, 0, 2, 1, 3).reshape(B, Sq, Hq * Dh) @ wo

    x = A_x
    g = _sigmoid((x * gate_w).sum(-1, keepdims=True))
    a = _A_ref(x, A_k_cache, A_v_cache, A_wq, A_wo)
    b = _B_ref(x, B_k_cache, B_v_cache, B_wq, B_wo)
    return g * a + (1 - g) * b
```

```python
import sys, math, struct
NAME = "gated_mix__mha_block_cached__gqa_block_cached__decode"
HDR = open("cdna_kernels/%s.s.ref" % NAME).read().split("; Override")[0]
def f2u(x): return struct.unpack("<I", struct.pack("<f", x))[0]
QPA, QPB, QBF, PBO, PBML, MA, MB, GT, H2 = 0x100000, 0x200000, 0x300000, 0x400000, 0x500000, 0x600000, 0x610000, 0x620000, 0x700000
STG = 131072; BPART = STG; BML = 147456; AM = 147712; QA = 149888; QB = 150144; OA = 152192; OB = 154240; LG = 156288
NT = 36
FLGW, FMAG = 0xE0000, 0x5A5A5A00
def gen(fn, pre=0, wf=1, NBT2=None, W2=2, PFN=0, PFS=6, pfpol="", EPO=0xF0000, lc=0, pp=0, ep=1, PW=0, st2=0, LOOK=2, NBT=(4,4,4,4,4,4,4,4), hmap=1, prio=3, NA1=16, NB=40, qpol=" nt", H=4, stamps=False, nt=" nt", wnt=" nt", sleep=0):
    o = []
    SL = f"s_sleep {sleep}\n" if sleep else ""
    def A(s):
        for l in s.split("\n"): o.append("    " + l.strip() if not l.strip().endswith(":") else l.strip())
    lab = [0]
    def L(p): lab[0] += 1; return f"L_{p}{lab[0]}"
    def stamp(i, early=0):
        if stamps and (early == st2 or i not in (2, 3, 4)): A(f"s_memrealtime s[{80+2*i}:{81+2*i}]")
    o.append(HDR + "; @launch grid=(256,1,1) block=(512,1,1) lds=163840")
    o.append('.amdgcn_target "amdgcn-amd-amdhsa--gfx950"\n.text')
    o.append(f".globl {NAME}_kernel\n.p2align 8\n.type {NAME}_kernel,@function\n{NAME}_kernel:")
    A("s_cmp_ge_u32 s2, 256\ns_cbranch_scc1 L_end")
    A("s_load_dwordx16 s[40:55], s[0:1], 0\ns_load_dwordx8 s[56:63], s[0:1], 64\ns_load_dwordx4 s[64:67], s[0:1], 96")
    stamp(0)
    A("v_lshrrev_b32 v1, 6, v0\nv_and_b32 v0, 63, v0\nv_readfirstlane_b32 s3, v1")
    A("s_lshr_b32 s4, s2, 5\ns_and_b32 s5, s2, 31" if hmap == 0 else "s_lshr_b32 s4, s2, 5\ns_and_b32 s5, s2, 7\ns_lshl_b32 s5, s5, 2\ns_bfe_u32 s6, s2, 0x20003\ns_add_u32 s5, s5, s6")
    A("s_lshr_b32 s6, s5, 3\ns_and_b32 s7, s5, 7")
    A(f"s_mov_b32 s72, {f2u(128**-0.5*math.log2(math.e)):#x}")
    A("v_lshrrev_b32 v1, 4, v0\nv_and_b32 v2, 15, v0\nv_lshlrev_b32 v3, 1, v1\nv_xor_b32 v3, v3, v2\nv_lshlrev_b32 v3, 4, v3")
    A("s_mov_b32 s11, 0x20000\ns_mov_b32 s15, 0x20000\ns_mov_b32 s27, 0x20000\ns_mov_b32 s35, 0x20000")
    A("s_lshl_b32 s19, s5, 3\ns_add_u32 s19, s19, s4\ns_lshl_b32 s76, s19, 8")
    A("s_lshl_b32 s19, s4, 5\ns_add_u32 s19, s19, s5\ns_lshl_b32 s78, s19, 8")
    A("v_lshlrev_b32 v6, 4, v0\nv_lshlrev_b32 v7, 2, v0")
    A("s_cmp_ge_u32 s3, 4\ns_cbranch_scc1 L_ctrl")
    XW, YO = (4096, 16384) if H == 4 else (8192, 4096)
    A("v_lshl_add_u32 v4, v1, 8, v3\nv_xor_b32 v5, 0x80, v4")
    A("s_lshl_b32 s21, s3, 15")
    A(f"s_lshl_b32 s16, s4, 5\ns_add_u32 s16, s16, s5\ns_lshl_b32 s16, s16, 20\ns_mul_i32 s19, s3, {XW}\ns_add_u32 s16, s16, s19\ns_add_u32 s17, s16, {YO}")
    def packs(N):
        stp = [sum(N[:c]) for c in range(8)]
        assert sum(N) == 32 and all(n % 2 == 0 and 2 <= n <= 14 for n in N)
        return sum(n << (4*c) for c, n in enumerate(N)), sum(v << (8*c) for c, v in enumerate(stp))
    nbp, sp = packs(NBT); nbp2, sp2 = packs(NBT2 or NBT)
    A(f"s_mov_b32 s39, {nbp:#x}\ns_mov_b32 s36, {sp & 0xffffffff:#x}\ns_mov_b32 s37, {sp >> 32:#x}\ns_cmp_ge_u32 s3, {W2}\ns_cmov_b32 s39, {nbp2:#x}\ns_cmov_b32 s36, {sp2 & 0xffffffff:#x}\ns_cmov_b32 s37, {sp2 >> 32:#x}")
    A(f"s_lshl_b32 s23, s7, 2\ns_lshr_b32 s39, s39, s23\ns_and_b32 s39, s39, 15\ns_lshl_b32 s23, s7, 3\ns_lshr_b64 s[36:37], s[36:37], s23\ns_and_b32 s23, s36, 255\ns_lshl_b32 s23, s23, 15")
    A(f"s_lshl_b32 s22, s4, 2\ns_add_u32 s22, s22, s6\ns_lshl_b32 s22, s22, 20\ns_add_u32 s22, s22, s23\ns_add_u32 s22, s22, s19")
    LT = LOOK // 2
    A(f"s_add_u32 s23, s39, 30\ns_add_u32 s39, s39, {NA1}\ns_sub_u32 s38, s39, {LT}\ns_mov_b32 s36, {NA1-LT}\ns_mov_b32 s37, {NA1}")
    A("s_waitcnt lgkmcnt(0)")
    A("s_mov_b32 s8, s42\ns_mov_b32 s9, s43\ns_mov_b32 s10, 0x10000000\ns_mov_b32 s12, s44\ns_mov_b32 s13, s45\ns_mov_b32 s14, 0x10000000")
    def issue_kv(isv, par, dx=0, win=0, pre=0):
        srd = "s[12:15]" if isv else "s[8:11]"
        for blk in range(2):
            A(f"s_add_u32 m0, s21, {par*16384 + isv*8192 + blk*4096}")
            so = f"s{16+blk}"
            if dx: A(f"s_add_u32 s19, s{16+blk}, {dx}"); so = "s19"
            else: A("s_nop 0")
            for t in range(4):
                if win and pre + blk*4 + t >= win: A(f"s_waitcnt vmcnt({win-1})")
                A(f"buffer_load_dwordx4 v{4+(t&1)}, {srd}, {so} offen offset:{t*1024}{nt} lds")
    def tagf(r, t): A(f"v_and_b32 v{r}, 0xff, v{r}\nv_add_u32 v{t}, 0xffffff02, v{r}\nv_min_u32 v{r}, v{r}, v{t}\nv_add_u32 v{r}, 1, v{r}")
    def clr4k(base, d=8, a=12):
        A(f"s_lshl_b32 s19, s78, 4\ns_add_u32 s19, s19, {base}\nv_add_u32 v{a}, s19, v6")
        for i in range(4): A(f"global_store_dwordx4 v{a}, v[{d}:{d+3}], s[66:67] offset:{i*1024} sc1")
    def clr1(sr, sh, base, ex, d=8, a=12):
        A(f"s_lshr_b32 s19, {sr}, {sh}\ns_add_u32 s19, s19, {base}\nv_add_u32 v{a}, s19, v7\ns_mov_b64 exec, {ex}\nglobal_store_dword v{a}, v{d}, s[66:67] sc1\ns_mov_b64 exec, -1")
    def clears(w0, d, a, c):
        for k in range(4): A(f"v_mov_b32 v{d+k}, -1")
        A(f"s_sub_u32 s19, s3, {w0}\ns_cmp_ge_u32 s19, 2\ns_cbranch_scc1 L_noclr\ns_cmp_eq_u32 s19, 1\ns_cbranch_scc1 L_clr1")
        clr4k(QPB, d, a); clr1("s76", 0, MA, -1, d, a); clr1("s76", 0, MB, -1, d, a); clr1("s76", 5, GT, 3, d, a)
        A("s_branch L_clr2\nL_clr1:")
        clr4k(H2, d, a); clr4k(PBO, d, a); clr1("s78", 0, QBF, -1, d, a); clr1("s78", 2, PBML, 0xffff, d, a)
        A("L_clr2:" if lc else "L_clr2:\nL_noclr:")
        if wf: A(f"s_lshr_b32 s19, s78, 5\ns_lshl_b32 s20, s3, 2\ns_add_u32 s19, s19, s20\ns_add_u32 s19, s19, {FLGW-4*w0}\nv_mov_b32 v{c}, s19")
        else: A(f"s_lshl_b32 s19, s4, 2\ns_add_u32 s19, s19, 128\nv_mov_b32 v{c}, s19\nv_mov_b32 v{c-1}, 1")
        if lc and wf: A(f"v_or_b32 v{c-1}, {FMAG:#x}, v9\ns_waitcnt vmcnt(0)\ns_mov_b64 exec, 1\nglobal_store_dword v{c}, v{c-1}, s[66:67] sc1\ns_mov_b64 exec, -1")
        elif lc: A(f"s_waitcnt vmcnt(0)\ns_mov_b64 exec, 1\nglobal_atomic_add v{c}, v{c-1}, s[64:65]\ns_mov_b64 exec, -1")
        if lc: A("L_noclr:")
    assert ep or not wf
    if wf and not lc: A(f"v_mov_b32 v22, {EPO:#x}\nglobal_load_dword v22, v22, s[66:67] sc1")
    if not lc: clears(0, 8, 12, 23)
    issue_kv(0, 0, 0, PW, 0)
    A("s_barrier")
    issue_kv(1, 0, 0, PW, 8); issue_kv(0, 1, 32768, PW, 16); issue_kv(1, 1, 32768, PW, 24)
    A("v_and_b32 v6, 7, v2\nv_lshlrev_b32 v6, 1, v6\nv_xor_b32 v6, v6, v1\nv_lshlrev_b32 v6, 4, v6\nv_lshl_add_u32 v6, v2, 8, v6\nv_add_u32 v8, s21, v6")
    for j in range(1, 4): A(f"v_xor_b32 v{8+j}, {j*64}, v8")
    A("v_lshrrev_b32 v6, 2, v2\nv_lshl_add_u32 v6, v1, 2, v6\nv_and_b32 v7, 7, v6\nv_lshlrev_b32 v7, 5, v7\nv_lshl_add_u32 v6, v6, 8, v7\nv_and_b32 v7, 3, v0\nv_lshl_add_u32 v6, v7, 3, v6\nv_add_u32 v6, s21, v6\nv_add_u32 v12, 8192, v6")
    for db in range(1, 8): A(f"v_xor_b32 v{12+db}, {db*32}, v12")
    A(f"v_lshlrev_b32 v20, 4, v1\nv_and_b32 v21, 7, v0\nv_lshl_add_u32 v21, v21, 8, v20")
    A("s_add_u32 s16, s16, 65536\ns_add_u32 s17, s17, 65536")
    Q, KF, VF, S, P, ACC, SAV = 24, 40, 72, 104, 112, 116, 152
    M, LS, T0, T1, T2, MC = 148, 149, 150, 151, 186, 187
    def init_state():
        for i in range(32): A(f"v_mov_b32 v{ACC+i}, 0")
        A(f"v_mov_b32 v{M}, 0xff7fffff\nv_mov_b32 v{LS}, 0")
    def load_q(addr, base):
        for j in range(4): A(f"ds_read_b128 v[{Q+4*j}:{Q+4*j+3}], v{addr} offset:{base+64*j}")
    init_state()
    if wf and not lc:
        A("s_waitcnt vmcnt(32)\ns_cmp_ge_u32 s3, 2\ns_cbranch_scc1 L_nosig")
        tagf(22, 24)
        A(f"v_or_b32 v22, {FMAG:#x}, v22\ns_mov_b64 exec, 1\nglobal_store_dword v23, v22, s[66:67] sc1\ns_mov_b64 exec, -1\ns_nop 1\nL_nosig:")
    elif not lc: A("s_cmp_ge_u32 s3, 2\ns_cbranch_scc1 L_nosig\ns_waitcnt vmcnt(32)\ns_mov_b64 exec, 1\nglobal_atomic_add v23, v22, s[64:65]\ns_mov_b64 exec, -1\ns_nop 1\nL_nosig:")
    A(f"v_add_u32 v22, {QA}, v20\nv_add_u32 v23, {QB}, v21")
    A("s_barrier")
    load_q(22, 0)
    def issue_wo(isv, par):
        A(f"s_mov_b32 s24, s{58 if isv else 48}\ns_mov_b32 s25, s{59 if isv else 49}\ns_mov_b32 s26, 0x800000")
        for t in range(8):
            A(f"s_add_u32 m0, s21, {par*16384 + isv*8192 + t*1024}\ns_add_u32 s19, s18, {t*8192}")
            A(f"buffer_load_dwordx4 v{6+(t&1)}, s[24:27], s19 offen{wnt} lds")
    def xlane(op, r):
        for sw in ("v_permlane32_swap_b32", "v_permlane16_swap_b32"):
            A(f"v_mov_b32 v{T1}, v{r}\ns_nop 1\n{sw} v{r}, v{T1}\ns_nop 1\n{op} v{r}, v{r}, v{T1}")
    def tile(par, kvp, wo, vw):
        po = par * 16384
        A(f"s_waitcnt vmcnt({vw[0]})")
        for blk in range(2):
            for j in range(4):
                A(f"ds_read_b128 v[{KF+16*blk+4*j}:{KF+16*blk+4*j+3}], v{8+j} offset:{po+blk*4096}")
        A("s_waitcnt lgkmcnt(0)")
        if kvp is not None: issue_kv(0, kvp)
        if wo: issue_wo(0, par)
        for j in range(4):
            for blk in range(2):
                c = "0" if j == 0 else f"v[{S+4*blk}:{S+4*blk+3}]"
                A(f"v_mfma_f32_16x16x32_bf16 v[{S+4*blk}:{S+4*blk+3}], v[{KF+16*blk+4*j}:{KF+16*blk+4*j+3}], v[{Q+4*j}:{Q+4*j+3}], {c}")
        A(f"s_waitcnt vmcnt({vw[1]})")
        for db in range(8):
            for blk in range(2):
                A(f"ds_read_b64_tr_b16 v[{VF+4*db+2*blk}:{VF+4*db+2*blk+1}], v{12+db} offset:{po+blk*4096}")
        A(f"v_max3_f32 v{T0}, v{S}, v{S+1}, v{S+2}\nv_max3_f32 v{T2}, v{S+3}, v{S+4}, v{S+5}\nv_max3_f32 v{T0}, v{T0}, v{S+6}, v{S+7}\nv_max3_f32 v{T0}, v{T0}, v{T2}, v{M}")
        xlane("v_max_f32", T0)
        sk = L("sk")
        A(f"v_cmp_neq_f32 vcc, v{T0}, v{M}\nv_mul_f32 v{MC}, s72, v{T0}\ns_cbranch_vccz {sk}")
        A(f"v_sub_f32 v{T2}, v{M}, v{T0}\nv_mul_f32 v{T2}, s72, v{T2}\nv_exp_f32 v{T2}, v{T2}\nv_mov_b32 v{M}, v{T0}\nv_mul_f32 v{LS}, v{LS}, v{T2}")
        for i in range(32): A(f"v_mul_f32 v{ACC+i}, v{ACC+i}, v{T2}")
        A(f"{sk}:")
        for i in range(8): A(f"v_fma_f32 v{S+i}, v{S+i}, s72, -v{MC}")
        for i in range(8): A(f"v_exp_f32 v{S+i}, v{S+i}")
        A(f"v_add_f32 v{T0}, v{S}, v{S+1}\nv_add_f32 v{T2}, v{S+2}, v{S+3}")
        for i in range(4): A(f"v_cvt_pk_bf16_f32 v{P+i}, v{S+2*i}, v{S+2*i+1}")
        A(f"v_add_f32 v{T0}, v{T0}, v{S+4}\nv_add_f32 v{T2}, v{T2}, v{S+5}\nv_add_f32 v{T0}, v{T0}, v{S+6}\nv_add_f32 v{T2}, v{T2}, v{S+7}\nv_add_f32 v{LS}, v{LS}, v{T0}\nv_add_f32 v{LS}, v{LS}, v{T2}")
        A("s_waitcnt lgkmcnt(0)")
        if kvp is not None:
            issue_kv(1, kvp); A("s_add_u32 s16, s16, 32768\ns_add_u32 s17, s17, 32768")
        if wo: issue_wo(1, par)
        for db in range(8):
            A(f"v_mfma_f32_16x16x32_bf16 v[{ACC+4*db}:{ACC+4*db+3}], v[{VF+4*db}:{VF+4*db+3}], v[{P}:{P+3}], v[{ACC+4*db}:{ACC+4*db+3}]")
    def lstamp():
        if stamps: A("s_memrealtime s[80:81]\ns_lshl_b32 s19, s2, 9\ns_lshl_b32 s82, s3, 7\ns_add_u32 s19, s19, s82\ns_lshl_b32 s82, s20, 1\ns_add_u32 s19, s19, s82\ns_add_u32 s19, s19, 0x10000\nv_mov_b32 v188, s19\ns_waitcnt lgkmcnt(0)\nv_mov_b32 v189, s80\nglobal_store_dword v188, v189, s[66:67]")
    def ev(sreg, nm): A(f"s_cmp_eq_u32 s20, s{sreg}\ns_cbranch_scc1 L_ev{nm}\nL_r{nm}:")
    if LOOK == 4:
        A("s_mov_b32 s20, 0\nL_loop:"); lstamp()
        ev(36, "IB"); ev(37, "B0"); ev(38, "IA"); ev(39, "B1")
        tile(0, 0, 0, (24, 24)); tile(1, 1, 0, (24, 24))
        A("s_add_u32 s20, s20, 2")
    else:
        tile(0, None, 0, (24, 16)); tile(1, 0, 0, (8, 8))
        A("s_mov_b32 s20, 2\nL_loop:"); lstamp()
        ev(37, "B0"); ev(39, "B1")
        tile(0, 1, 0, (8, 8))
        A("s_add_u32 s20, s20, 1")
        ev(36, "IB"); ev(38, "IA")
        tile(1, 0, 0, (8, 8))
        A("s_add_u32 s20, s20, 1")
    A("s_cmp_lt_u32 s20, s23\ns_cbranch_scc1 L_loop")
    lstamp()
    A("v_lshl_add_u32 v6, v1, 11, v3\nv_xor_b32 v7, 0x80, v6")
    A("s_lshl_b32 s18, s5, 18\ns_lshl_b32 s19, s3, 16\ns_add_u32 s18, s18, s19\ns_lshl_b32 s19, s4, 8\ns_add_u32 s18, s18, s19")
    if LOOK == 4: tile(0, None, 1, (24, 24)); tile(1, None, 0, (24, 16))
    else: tile(0, 1, 1, (8, 16)); tile(1, None, 0, (24, 8))
    xlane("v_add_f32", LS)
    A(f"s_mul_i32 s19, s3, 544\ns_add_u32 s19, s19, {AM}\nv_add_u32 v22, s19, v20\nv_mov_b32 v23, s19\nv_cmp_eq_u32 vcc, 0, v2\ns_nop 4\ns_and_saveexec_b64 s[68:69], vcc")
    for db in range(8): A(f"ds_write_b128 v22, v[{ACC+4*db}:{ACC+4*db+3}] offset:{db*64}")
    A(f"ds_write_b64 v23, v[{M}:{LS}] offset:512\ns_mov_b64 exec, s[68:69]\ns_waitcnt lgkmcnt(0)\ns_barrier")
    A("v_lshrrev_b32 v22, 2, v2\nv_lshl_add_u32 v23, v1, 3, v22\nv_lshlrev_b32 v23, 8, v23\nv_and_b32 v32, 3, v0\nv_lshl_add_u32 v23, v32, 3, v23")
    A("s_lshl_b32 s19, s3, 1\nv_xor_b32 v22, s19, v22\nv_lshl_add_u32 v24, v22, 5, v23\nv_xor_b32 v25, 0x80, v24\nv_add_u32 v25, 1024, v25\nv_xor_b32 v26, 32, v24\nv_xor_b32 v27, 32, v25")
    for i in range(4): A(f"v_add_u32 v{28+i}, 0x10000, v{24+i}")
    A(f"v_add_u32 v32, {OA}, v21\nv_and_b32 v33, 7, v0\nv_lshlrev_b32 v33, 3, v33\nv_add_u32 v33, {LG}, v33")
    A(f"s_lshl_b32 s19, s4, 5\ns_add_u32 s19, s19, s3\ns_lshl_b32 s19, s19, 5\ns_add_u32 s19, s19, s5\ns_lshl_b32 s19, s19, 7\ns_add_u32 s19, s19, {H2}\nv_lshlrev_b32 v34, 14, v2\nv_add3_u32 v34, v34, v20, s19")
    A("s_waitcnt vmcnt(0)\ns_barrier")
    WF = 40
    for br in range(2):
        for cb in range(2):
            for s in range(4):
                r = WF + ((br*2+cb)*4+s)*4
                for xy in range(2):
                    A(f"ds_read_b64_tr_b16 v[{r+2*xy}:{r+2*xy+1}], v{24+4*(s>>1)+2*cb+xy} offset:{(s&1)*32768+br*8192}")
    OF = 116
    for s in range(4): A(f"ds_read_b128 v[{OF+16+4*s}:{OF+16+4*s+3}], v32 offset:{2048+64*s}")
    A("ds_read_b64 v[36:37], v33\ns_waitcnt lgkmcnt(0)")
    for s in range(4):
        for cb in range(2):
            r = WF + ((2+cb)*4+s)*4; c = "0" if s == 0 else f"v[{160+4*cb}:{163+4*cb}]"
            A(f"v_mfma_f32_16x16x32_bf16 v[{160+4*cb}:{163+4*cb}], v[{r}:{r+3}], v[{OF+16+4*s}:{OF+16+4*s+3}], {c}")
    A("s_barrier")
    for s in range(4): A(f"ds_read_b128 v[{OF+4*s}:{OF+4*s+3}], v32 offset:{64*s}")
    for i in range(8): A(f"v_mul_f32 v{160+i}, v37, v{160+i}")
    A("v_cmp_gt_u32 vcc, 8, v2\ns_waitcnt lgkmcnt(0)")
    for s in range(4):
        for cb in range(2):
            r = WF + (cb*4+s)*4; c = "0" if s == 0 else f"v[{152+4*cb}:{155+4*cb}]"
            A(f"v_mfma_f32_16x16x32_bf16 v[{152+4*cb}:{155+4*cb}], v[{r}:{r+3}], v[{OF+4*s}:{OF+4*s+3}], {c}")
    A("s_and_saveexec_b64 s[68:69], vcc\ns_nop 7")
    for i in range(8): A(f"v_fma_f32 v{160+i}, v36, v{152+i}, v{160+i}")
    for i in range(8): A(f"v_min_u32 v{160+i}, -2, v{160+i}")
    A("global_store_dwordx4 v34, v[160:163], s[66:67] sc1\nglobal_store_dwordx4 v34, v[164:167], s[66:67] offset:64 sc1\ns_endpgm")
    A("L_evIB:\ns_mov_b32 s18, s16\ns_mov_b32 s16, s22\n" + f"s_add_u32 s17, s16, {YO}\n" + "s_mov_b32 s8, s52\ns_mov_b32 s9, s53\ns_mov_b32 s10, 0x2000000\ns_mov_b32 s12, s54\ns_mov_b32 s13, s55\ns_mov_b32 s14, 0x2000000\ns_branch L_rIB")
    A("L_evIA:\ns_mov_b32 s16, s18\n" + f"s_add_u32 s17, s16, {YO}\n" + "s_mov_b32 s8, s42\ns_mov_b32 s9, s43\ns_mov_b32 s10, 0x10000000\ns_mov_b32 s12, s44\ns_mov_b32 s13, s45\ns_mov_b32 s14, 0x10000000\ns_branch L_rIA")
    A("L_evB0:\ns_barrier")
    load_q(23, 0)
    A("s_nop 7")
    for i in range(34): A(f"v_mov_b32 v{SAV+i}, v{ACC+i}")
    init_state()
    A("s_branch L_rB0")
    A("L_evB1:")
    xlane("v_add_f32", LS)
    A(f"s_lshl_b32 s19, s3, 12\ns_add_u32 s19, s19, {BPART}\nv_lshl_add_u32 v{T0}, v2, 9, v20\nv_add_u32 v{T0}, s19, v{T0}\ns_lshl_b32 s19, s3, 6\ns_add_u32 s19, s19, {BML}\nv_lshlrev_b32 v{T1}, 3, v2\nv_add_u32 v{T1}, s19, v{T1}\nv_cmp_gt_u32 vcc, 8, v2\ns_and_saveexec_b64 s[68:69], vcc")
    for db in range(8): A(f"ds_write_b128 v{T0}, v[{ACC+4*db}:{ACC+4*db+3}] offset:{db*64}")
    A(f"ds_write_b64 v{T1}, v[{M}:{LS}]\ns_mov_b64 exec, s[68:69]")
    load_q(22, 0)
    A("s_waitcnt lgkmcnt(0)\ns_barrier")
    for i in range(34): A(f"v_mov_b32 v{ACC+i}, v{SAV+i}")
    A("s_branch L_rB1")
    A("L_ctrl:")
    if prio: A(f"s_setprio {prio}")
    FLG = LG + 64
    G = 112
    XR, SEL, QAC, TT, WA = 24, 40, 48, 64, 192
    A("s_sub_u32 s3, s3, 4")
    A("v_lshlrev_b32 v4, 16, v1\nv_lshl_add_u32 v4, v2, 4, v4\nv_lshrrev_b32 v5, 3, v2\nv_lshlrev_b32 v5, 11, v5\nv_lshl_add_u32 v5, v1, 4, v5")
    A("s_lshl_b32 s18, s4, 20\ns_lshl_b32 s19, s3, 18\ns_add_u32 s18, s18, s19\ns_lshl_b32 s19, s5, 8\ns_add_u32 s18, s18, s19")
    A("s_lshl_b32 s16, s4, 8\ns_lshl_b32 s19, s3, 6\ns_add_u32 s16, s16, s19")
    A("s_waitcnt lgkmcnt(0)")
    A("s_mov_b32 s24, s46\ns_mov_b32 s25, s47\ns_mov_b32 s26, 0x800000\ns_mov_b32 s32, s40\ns_mov_b32 s33, s41\ns_mov_b32 s34, 16384")
    if ep: A(f"v_mov_b32 v9, {EPO:#x}\ns_movk_i32 s28, 0xff\nglobal_load_dword v9, v9, s[66:67] sc1")
    else:
        A("s_cmp_lg_u32 s3, 0\ns_cbranch_scc1 L_h1\nv_mov_b32 v8, -1\nv_mov_b32 v9, -1\nv_mov_b32 v10, -1\nv_mov_b32 v11, -1")
        clr4k(QPA)
        A("L_h1:")
    for p_ in range(4): A(f"s_add_u32 s19, s16, {4096*p_}\nbuffer_load_dwordx4 v[{XR+4*p_}:{XR+4*p_+3}], v5, s[32:35], s19 offen")
    def wloads():
        for i in range(8): A(f"s_add_u32 s19, s18, {i*8192}\nbuffer_load_dwordx4 v[{WA+4*i}:{WA+4*i+3}], v4, s[24:27], s19 offen{qpol}")
    wloads()
    A("v_and_b32 v48, 1, v2\nv_cmp_eq_u32 vcc, 1, v48\nv_bfe_u32 v49, v2, 1, 2")
    for p_ in range(2):
        A(f"v_mov_b32 v50, {0x0c0c0000 | ((2*p_+1) << 8) | (2*p_):#x}\nv_mov_b32 v51, {((2*p_+1) << 24) | ((2*p_) << 16) | 0x0c0c:#x}\nv_cndmask_b32 v{52+p_}, v50, v51, vcc")
    A("v_mov_b32 v50, 0x0c0c0c0c")
    for d in range(4):
        A(f"v_cmp_eq_u32 vcc, {d}, v49")
        for p_ in range(2): A(f"v_cndmask_b32 v{SEL+4*p_+d}, v50, v{52+p_}, vcc")
    A("v_cmp_gt_u32 s[70:71], 8, v2\nv_cmp_gt_u32 s[74:75], 32, v0")
    A(f"v_add_u32 v15, {FLG}, v7\nv_mov_b32 v16, 0\ns_mov_b64 exec, 0xffff\nds_write_b32 v15, v16\ns_mov_b64 exec, -1\ns_waitcnt lgkmcnt(0)\ns_barrier")
    A(f"s_lshl_b32 s19, s3, 12\ns_add_u32 s19, s19, {STG}\nv_lshrrev_b32 v14, 1, v1\nv_lshlrev_b32 v14, 9, v14\nv_lshl_add_u32 v14, v2, 5, v14\nv_and_b32 v16, 1, v1\nv_lshl_add_u32 v14, v16, 4, v14\nv_add_u32 v14, s19, v14")
    A(f"s_lshl_b32 s19, s3, 10\ns_add_u32 s19, s19, {STG}\nv_add_u32 v13, s19, v6")
    A("s_lshl_b32 s19, s3, 18\ns_lshl_b32 s17, s5, 12\ns_add_u32 s19, s19, s17\ns_lshl_b32 s17, s4, 9\ns_add_u32 s19, s19, s17\nv_lshrrev_b32 v12, 5, v0\nv_lshlrev_b32 v12, 17, v12\nv_and_b32 v16, 31, v0\nv_lshl_add_u32 v12, v16, 4, v12\nv_add_u32 v12, s19, v12")
    A("s_lshl_b32 s19, s5, 2\nv_mov_b32 v11, s19\ns_waitcnt vmcnt(8)")
    if ep: tagf(9, 10); A("s_nop 0\nv_readfirstlane_b32 s79, v9")
    else: A("s_cmp_lg_u32 s3, 0\ns_cbranch_scc1 L_h2\nv_mov_b32 v10, 1\ns_mov_b64 exec, 1\nglobal_atomic_add v11, v10, s[64:65]\ns_mov_b64 exec, -1\ns_branch L_h2b\nL_h2:\nbuffer_load_dword v10, v5, s[32:35], s16 offen\nL_h2b:")
    stamp(2, 1)
    for i in range(8):
        for p_ in range(4):
            for d in range(4): A(f"v_perm_b32 v{TT+16*i+4*p_+d}, v{XR+4*p_+(i>>1)}, v{XR+4*p_+(i>>1)}, v{SEL+4*(i&1)+d}")
    def qgemm(newer):
        for i in range(8):
            A(f"s_waitcnt vmcnt({7-i+newer})")
            for p_ in range(4):
                ac = QAC + 4*p_; c = "0" if i == 0 else f"v[{ac}:{ac+3}]"
                A(f"v_mfma_f32_16x16x32_bf16 v[{ac}:{ac+3}], v[{TT+16*i+4*p_}:{TT+16*i+4*p_+3}], v[{WA+4*i}:{WA+4*i+3}], {c}")
        A("s_nop 7")
        for p_ in range(4): A(f"ds_write_b128 v14, v[{QAC+4*p_}:{QAC+4*p_+3}] offset:{1024*p_}")
        A("s_waitcnt lgkmcnt(0)")
    def hsync(fo):
        lp = L("fl"); dn = L("fd")
        A(f"s_lshl_b32 s19, s3, 2\ns_add_u32 s19, s19, {FLG+4*fo}\nv_mov_b32 v17, s19\nv_mov_b32 v16, 1\nds_write_b32 v17, v16")
        A(f"s_mov_b32 s77, 0x100000\n{lp}:\nds_read_b32 v16, v15\ns_waitcnt lgkmcnt(0)\nv_cmp_eq_u32 vcc, 0, v16\ns_and_b32 s19, vcc_lo, {0xf << fo:#x}\ns_cbranch_scc0 {dn}\ns_sub_u32 s77, s77, 1\ns_cmp_lg_u32 s77, 0\ns_cbranch_scc1 {lp}\n{dn}:")
    def qred():
        for w in range(4): A(f"ds_read_b128 v[{QAC+4*w}:{QAC+4*w+3}], v13 offset:{4096*w}")
        A("s_waitcnt lgkmcnt(0)")
        for k in range(4): A(f"v_add_f32 v{QAC+k}, v{QAC+k}, v{QAC+4+k}\nv_add_f32 v{QAC+8+k}, v{QAC+8+k}, v{QAC+12+k}")
        for k in range(4): A(f"v_add_f32 v{QAC+k}, v{QAC+k}, v{QAC+8+k}")
        for k in range(4): A(f"v_min_u32 v{QAC+k}, -2, v{QAC+k}")
    def cwait(val, creg, areg):
        lp = L("cw"); dn = L("cd")
        A(f"s_waitcnt vmcnt(0)\ns_mov_b32 s77, 0x8000\n{lp}:\nv_cmp_ne_u32 vcc, {val}, v{creg}\ns_cbranch_vccz {dn}\nglobal_load_dword v{creg}, v{areg}, s[64:65] sc1\ns_waitcnt vmcnt(0)\ns_sub_u32 s77, s77, 1\ns_cmp_lg_u32 s77, 0\ns_cbranch_scc1 {lp}\n{dn}:")
    def spoll(loads, t=110, tag=None, full=0):
        lp = L("sp"); dn = L("sd")
        A(f"s_mov_b32 s77, 0x8000\n{lp}:")
        regs = []
        for d, n, ar, off in loads:
            A(f"global_load_dwordx{n} v[{d}:{d+n-1}], v{ar}, s[66:67] offset:{off} sc1"); regs += list(range(d, d+n))
        A("s_waitcnt vmcnt(0)")
        if tag is not None:
            A(f"v_xor_b32 v{t}, v{tag}, v{regs.pop()}")
            while len(regs) >= 2: A(f"v_xor_b32 v{t+1}, v{tag}, v{regs.pop()}\nv_xor_b32 v{t+2}, v{tag}, v{regs.pop()}\nv_or3_b32 v{t}, v{t}, v{t+1}, v{t+2}")
            if regs: A(f"v_xor_b32 v{t+1}, v{tag}, v{regs.pop()}\nv_or_b32 v{t}, v{t}, v{t+1}")
            if not full: A(f"v_and_b32 v{t}, 0xff, v{t}")
            A(f"v_cmp_ne_u32 vcc, 0, v{t}\ns_cbranch_vccz {dn}\ns_sub_u32 s77, s77, 1\ns_cmp_lg_u32 s77, 0\ns_cbranch_scc1 {lp}\n{dn}:")
            return
        A(f"v_max3_u32 v{t}, v{regs.pop()}, v{regs.pop()}, v{regs.pop()}")
        while len(regs) >= 2: A(f"v_max3_u32 v{t}, v{t}, v{regs.pop()}, v{regs.pop()}")
        if regs: A(f"v_max_u32 v{t}, v{t}, v{regs.pop()}")
        A(f"v_cmp_eq_u32 vcc, -1, v{t}\ns_cbranch_vccz {dn}\n{SL}s_sub_u32 s77, s77, 1\ns_cmp_lg_u32 s77, 0\ns_cbranch_scc1 {lp}\n{dn}:")
    def sum4_cvt(G=G):
        for k in range(4): A(f"v_add_f32 v{G+k}, v{G+k}, v{G+4+k}\nv_add_f32 v{G+8+k}, v{G+8+k}, v{G+12+k}")
        for k in range(4): A(f"v_add_f32 v{G+k}, v{G+k}, v{G+8+k}")
        for k in range(4): A(f"v_mov_b32 v{G+16+k}, v{G+k}")
        A("s_nop 1")
        for k in range(4): A(f"v_permlane32_swap_b32 v{G+k}, v{G+16+k}")
        A("s_nop 1")
        for k in range(4): A(f"v_add_f32 v{G+k}, v{G+k}, v{G+16+k}")
    qgemm(0 if ep else 1)
    stamp(3, 1)
    if not ep:
        A("s_cmp_lg_u32 s3, 0\ns_cbranch_scc1 L_h3\nglobal_load_dword v10, v11, s[64:65] sc1")
        cwait(8, 10, 11)
        A("L_h3:")
    hsync(0)
    qred()
    if ep:
        for k in range(4): A(f"v_bfi_b32 v{QAC+k}, s28, v9, v{QAC+k}")
    A(f"v_add_u32 v16, {QPA}, v12\nglobal_store_dwordx4 v16, v[{QAC}:{QAC+3}], s[66:67] sc1")
    stamp(4, 1)
    A("s_mov_b32 s24, s56\ns_mov_b32 s25, s57\ns_cmp_lg_u32 s3, 0\ns_cbranch_scc1 L_noq")
    G2 = 224
    A(f"s_lshl_b32 s19, s78, 4\ns_add_u32 s19, s19, {QPA}\nv_add_u32 v16, s19, v6\nv_and_b32 v17, 31, v0\nv_lshlrev_b32 v17, 3, v17\nv_add_u32 v17, {QA}, v17")
    if pp:
        G3 = 192
        def pl(g):
            for i in range(4): A(f"global_load_dwordx4 v[{g+4*i}:{g+4*i+3}], v16, s[66:67] offset:{1024*i} sc1")
        def pchk(g, dn):
            A(f"s_waitcnt vmcnt(4)\nv_xor_b32 v18, v9, v{g}\nv_xor_b32 v19, v9, v{g+1}\nv_or_b32 v18, v18, v19")
            for k in range(2, 16, 2): A(f"v_xor_b32 v19, v9, v{g+k}\nv_xor_b32 v20, v9, v{g+k+1}\nv_or3_b32 v18, v18, v19, v20")
            A(f"v_and_b32 v18, 0xff, v18\nv_cmp_ne_u32 vcc, 0, v18\ns_cbranch_vccz {dn}")
        pl(G2)
        for _ in range(pp): A("s_nop 15")
        A("s_mov_b32 s77, 0x8000\nL_pp:")
        pl(G3); pchk(G2, "L_ppa"); pl(G2); pchk(G3, "L_ppb")
        A("s_sub_u32 s77, s77, 1\ns_cmp_lg_u32 s77, 0\ns_cbranch_scc1 L_pp\nL_ppb:")
        sum4_cvt(G3)
        A(f"v_cvt_pk_bf16_f32 v{G3}, v{G3}, v{G3+1}\nv_cvt_pk_bf16_f32 v{G3+1}, v{G3+2}, v{G3+3}\nds_write_b64 v17, v[{G3}:{G3+1}]\ns_branch L_ppj\nL_ppa:")
    else: spoll([(G2+4*i, 4, 16, 1024*i) for i in range(4)], 18, 9 if ep else None)
    sum4_cvt(G2)
    A(f"v_cvt_pk_bf16_f32 v{G2}, v{G2}, v{G2+1}\nv_cvt_pk_bf16_f32 v{G2+1}, v{G2+2}, v{G2+3}\nds_write_b64 v17, v[{G2}:{G2+1}]\nL_ppj:\ns_waitcnt lgkmcnt(0)\ns_barrier")
    stamp(1)
    if pp: A("s_waitcnt vmcnt(0)")
    wloads()
    A("s_branch L_q2\nL_noq:")
    if PFN:
        A(f"s_cmp_eq_u32 s3, 3\ns_cbranch_scc1 L_nopf\ns_lshl_b32 s19, s78, 12\ns_add_u32 s19, s19, 65536\nv_lshlrev_b32 v245, {PFS}, v0\nv_add_u32 v245, s19, v245")
        A("s_mov_b32 s30, s42\ns_mov_b32 s31, s43\ns_cmp_eq_u32 s3, 2\ns_cselect_b32 s30, s44, s30\ns_cselect_b32 s31, s45, s31")
        for i in range(PFN): A(f"global_load_dword v244, v245, s[30:31]{pfpol}\nv_add_u32 v245, {64 << PFS}, v245")
        A("L_nopf:")
    wloads()
    A("s_barrier\nL_q2:")
    qgemm(0)
    if lc: clears(1, 244, 248, 250)
    if wf:
        A(f"s_cmp_lg_u32 s3, 0\ns_cbranch_scc1 L_h4\nv_add_u32 v11, {FLGW}, v6\nv_or_b32 v10, {FMAG:#x}, v9")
        spoll([(G2, 4, 11, 0), (G2+4, 4, 11, 1024)], 18, 10, 1)
    else:
        A("s_cmp_lg_u32 s3, 0\ns_cbranch_scc1 L_h4\nv_and_b32 v11, 7, v0\nv_lshlrev_b32 v11, 2, v11\nv_add_u32 v11, 128, v11\nglobal_load_dword v10, v11, s[64:65] sc1")
        cwait(64, 10, 11)
    A("L_h4:")
    hsync(4)
    qred()
    A(f"v_add_u32 v16, {QPB}, v12\nglobal_store_dwordx4 v16, v[{QAC}:{QAC+3}], s[66:67] sc1")
    A("s_cmp_eq_u32 s3, 0\ns_cbranch_scc1 L_main\ns_endpgm\nL_main:")
    A("v_mov_b32 v108, v6\nv_and_b32 v144, 31, v0\nv_lshlrev_b32 v144, 3, v144")
    A(f"s_add_u32 s19, s76, {MA}\nv_add_u32 v150, s19, v7\ns_lshl_b32 s19, s78, 4\ns_add_u32 s19, s19, {H2}\nv_add_u32 v151, s19, v108")
    A("s_lshl_b32 s19, s4, 11\nv_lshlrev_b32 v152, 5, v0\nv_add_u32 v153, s19, v152")
    A("global_load_dwordx4 v[156:159], v153, s[40:41]\nglobal_load_dwordx4 v[160:163], v153, s[40:41] offset:16\nglobal_load_dwordx4 v[164:167], v152, s[60:61]\nglobal_load_dwordx4 v[168:171], v152, s[60:61] offset:16")
    A(f"s_lshl_b32 s19, s78, 4\ns_add_u32 s19, s19, {QPB}\nv_add_u32 v111, s19, v108")
    if pre:
        A("v_and_b32 v107, 7, v0\nv_lshlrev_b32 v106, 9, v107\nv_add_u32 v106, s19, v106")
        spoll([(G, 4, 106, 0)])
    spoll([(G+4*i, 4, 111, 1024*i) for i in range(4)])
    sum4_cvt()
    A(f"v_cvt_pk_bf16_f32 v{G}, v{G}, v{G+1}\nv_cvt_pk_bf16_f32 v{G+1}, v{G+2}, v{G+3}\nv_min_u32 v{G}, -2, v{G}\nv_min_u32 v{G+1}, -2, v{G+1}\ns_add_u32 s19, s78, {QBF}\nv_add_u32 v16, s19, v144")
    A(f"s_mov_b64 exec, s[74:75]\nglobal_store_dwordx2 v16, v[{G}:{G+1}], s[66:67] sc1\ns_mov_b64 exec, -1")
    stamp(2)
    A("v_mov_b32 v154, 0")
    for i in range(8):
        A(f"v_lshlrev_b32 v172, 16, v{156+i}\nv_lshlrev_b32 v173, 16, v{164+i}\nv_and_b32 v174, 0xffff0000, v{156+i}\nv_and_b32 v175, 0xffff0000, v{164+i}")
        A("v_mul_f32 v172, v172, v173\nv_mul_f32 v174, v174, v175\nv_cvt_pk_bf16_f32 v172, v172, v174\nv_lshlrev_b32 v173, 16, v172\nv_and_b32 v172, 0xffff0000, v172\nv_add_f32 v154, v154, v173\nv_add_f32 v154, v154, v172")
    for sh in (8, 4, 2, 1): A(f"s_nop 1\nv_add_f32_dpp v154, v154, v154 row_ror:{sh} row_mask:0xf bank_mask:0xf")
    for sw in ("v_permlane32_swap_b32", "v_permlane16_swap_b32"):
        A(f"v_mov_b32 v155, v154\ns_nop 1\n{sw} v154, v155\ns_nop 1\nv_add_f32 v154, v154, v155")
    def rnd(r): A(f"v_cvt_pk_bf16_f32 v{r}, v{r}, v{r}\nv_and_b32 v{r}, 0xffff0000, v{r}")
    rnd(154)
    A(f"v_mul_f32 v154, {f2u(-math.log2(math.e)):#x}, v154\nv_exp_f32 v154, v154\ns_nop 0\nv_add_f32 v154, 1.0, v154\nv_rcp_f32 v154, v154\ns_nop 0")
    rnd(154); A("v_sub_f32 v155, 1.0, v154"); rnd(155)
    A(f"s_and_b32 s19, s78, 0xfffff800\ns_add_u32 s19, s19, {QBF}\nv_add_u32 v153, s19, v108")
    if pre:
        A("v_lshlrev_b32 v106, 8, v107\nv_add_u32 v106, s19, v106")
        spoll([(G, 4, 106, 0)])
    spoll([(G, 4, 153, 0), (G+4, 4, 153, 1024)])
    A(f"v_add_u32 v153, {QB}, v108\nds_write_b128 v153, v[{G}:{G+3}]\nds_write_b128 v153, v[{G+4}:{G+7}] offset:1024\ns_waitcnt lgkmcnt(0)")
    stamp(3)
    A("s_barrier\ns_barrier")
    A(f"v_lshlrev_b32 v152, 6, v0\nv_add_u32 v153, {BPART}, v152\nv_lshrrev_b32 v156, 3, v0\nv_lshlrev_b32 v157, 3, v156\nv_add_u32 v157, {BML}, v157")
    for w in range(4): A(f"ds_read_b64 v[{160+2*w}:{161+2*w}], v157 offset:{64*w}")
    for w in range(4):
        for i in range(4): A(f"ds_read_b128 v[{40+16*w+4*i}:{43+16*w+4*i}], v153 offset:{4096*w+16*i}")
    A("s_waitcnt lgkmcnt(0)\nv_max3_f32 v168, v160, v162, v164\nv_max_f32 v168, v168, v166")
    for w in range(4): A(f"v_sub_f32 v{160+2*w}, v{160+2*w}, v168\nv_mul_f32 v{160+2*w}, s72, v{160+2*w}\nv_exp_f32 v{160+2*w}, v{160+2*w}")
    A("s_nop 0\nv_mul_f32 v169, v160, v161\nv_fma_f32 v169, v162, v163, v169\nv_fma_f32 v169, v164, v165, v169\nv_fma_f32 v169, v166, v167, v169")
    for i in range(16):
        A(f"v_mul_f32 v{40+i}, v160, v{40+i}")
        for w in range(1, 4): A(f"v_fma_f32 v{40+i}, v{160+2*w}, v{40+16*w+i}, v{40+i}")
    A("s_lshl_b32 s19, s4, 2\ns_add_u32 s19, s19, s6\ns_lshl_b32 s19, s19, 6\ns_add_u32 s19, s19, s7\nv_lshl_add_u32 v156, v156, 3, s19")
    A(f"v_lshlrev_b32 v157, 3, v156\nv_add_u32 v157, {PBML}, v157\nv_lshlrev_b32 v156, 9, v156\nv_and_b32 v158, 7, v0\nv_lshl_add_u32 v156, v158, 6, v156\nv_add_u32 v156, {PBO}, v156")
    for r in list(range(40, 56)) + [168, 169]: A(f"v_min_u32 v{r}, -2, v{r}")
    for i in range(4): A(f"global_store_dwordx4 v156, v[{40+4*i}:{43+4*i}], s[66:67] offset:{16*i} sc1")
    A("global_store_dwordx2 v157, v[168:169], s[66:67] sc1")
    A(f"s_lshl_b32 s19, s78, 4\ns_add_u32 s19, s19, {PBO}\nv_add_u32 v111, s19, v108")
    A(f"s_lshr_b32 s19, s78, 2\ns_add_u32 s19, s19, {PBML}\nv_mov_b32 v109, s19")
    if pre:
        A("v_and_b32 v106, 3, v0\nv_lshl_add_u32 v106, v106, 4, v109")
        spoll([(G, 4, 106, 0)])
    spoll([(G+4*i, 4, 111, 1024*i) for i in range(4)] + [(40+4*i, 4, 109, 16*i) for i in range(4)])
    stamp(4)
    A("v_max3_f32 v56, v40, v42, v44\nv_max3_f32 v56, v56, v46, v48\nv_max3_f32 v56, v56, v50, v52\nv_max_f32 v56, v56, v54")
    for c in range(8): A(f"v_sub_f32 v{40+2*c}, v{40+2*c}, v56\nv_mul_f32 v{40+2*c}, s72, v{40+2*c}\nv_exp_f32 v{40+2*c}, v{40+2*c}")
    A("s_nop 0\nv_mul_f32 v57, v40, v41")
    for c in range(1, 8): A(f"v_fma_f32 v57, v{40+2*c}, v{41+2*c}, v57")
    A("v_rcp_f32 v57, v57")
    for i in range(4): A(f"v_cndmask_b32 v{58+i}, v{42+4*i}, v{40+4*i}, s[74:75]")
    for i in range(4):
        for k in range(4): A(f"v_mul_f32 v{G+4*i+k}, v{58+i}, v{G+4*i+k}")
    sum4_cvt()
    for k in range(4): A(f"v_mul_f32 v{G+k}, v57, v{G+k}")
    A(f"v_cvt_pk_bf16_f32 v{G}, v{G}, v{G+1}\nv_cvt_pk_bf16_f32 v{G+1}, v{G+2}, v{G+3}\nv_min_u32 v{G}, -2, v{G}\nv_min_u32 v{G+1}, -2, v{G+1}\ns_add_u32 s19, s76, {MB}\nv_add_u32 v153, s19, v144")
    A(f"s_lshr_b32 s19, s76, 5\ns_add_u32 s19, s19, {GT}\nv_mov_b32 v152, s19\ns_mov_b64 exec, s[74:75]\nglobal_store_dwordx2 v153, v[{G}:{G+1}], s[66:67] sc1\ns_mov_b64 exec, 1\nglobal_store_dwordx2 v152, v[154:155], s[66:67] sc1\ns_mov_b64 exec, -1")
    A(f"s_lshl_b32 s19, s5, 11\ns_add_u32 s17, s19, {MB}\nv_add_u32 v153, s17, v108\ns_add_u32 s17, s19, {MA}\nv_add_u32 v156, s17, v108\ns_lshl_b32 s19, s5, 6\ns_add_u32 s19, s19, {GT}\nv_and_b32 v152, 7, v0\nv_lshlrev_b32 v152, 3, v152\nv_add_u32 v157, s19, v152")
    if pre:
        A("v_and_b32 v106, 0xffffffef, v157\nv_and_b32 v106, 0xfffffff7, v106")
        spoll([(G, 4, 106, 0), (G+4, 4, 106, 16)])
    spoll([(G, 4, 153, 0), (G+4, 4, 153, 1024), (G+8, 2, 157, 0)])
    A(f"v_add_u32 v153, {OA}, v108\nv_add_u32 v152, {LG}, v152\nds_write_b128 v153, v[{G}:{G+3}] offset:2048\nds_write_b128 v153, v[{G+4}:{G+7}] offset:3072\nds_write_b64 v152, v[{G+8}:{G+9}]")
    A(f"v_lshlrev_b32 v158, 3, v0\nv_add_u32 v158, {AM}, v158\nv_mov_b32 v159, {AM}")
    A("s_lshr_b32 s19, s5, 2\ns_lshl_b32 s19, s19, 11\ns_lshl_b32 s17, s4, 8\ns_add_u32 s19, s19, s17\ns_and_b32 s17, s5, 3\ns_lshl_b32 s17, s17, 6\ns_add_u32 s19, s19, s17\nv_lshlrev_b32 v143, 3, v0\nv_add_u32 v143, s19, v143")
    A("s_waitcnt lgkmcnt(0)")
    stamp(5)
    A("s_barrier")
    stamp(6)
    for w in range(4): A(f"ds_read_b64 v[{160+2*w}:{161+2*w}], v159 offset:{544*w+512}\nds_read_b64 v[{40+2*w}:{41+2*w}], v158 offset:{544*w}")
    A("s_waitcnt lgkmcnt(0)\nv_max3_f32 v168, v160, v162, v164\nv_max_f32 v168, v168, v166")
    for w in range(4): A(f"v_sub_f32 v{160+2*w}, v{160+2*w}, v168\nv_mul_f32 v{160+2*w}, s72, v{160+2*w}\nv_exp_f32 v{160+2*w}, v{160+2*w}")
    A("s_nop 0\nv_mul_f32 v169, v160, v161\nv_fma_f32 v169, v162, v163, v169\nv_fma_f32 v169, v164, v165, v169\nv_fma_f32 v169, v166, v167, v169\nv_rcp_f32 v169, v169")
    for i in range(2):
        A(f"v_mul_f32 v{40+i}, v160, v{40+i}")
        for w in range(1, 4): A(f"v_fma_f32 v{40+i}, v{160+2*w}, v{40+2*w+i}, v{40+i}")
    A("v_mul_f32 v40, v169, v40\nv_mul_f32 v41, v169, v41\nv_cvt_pk_bf16_f32 v40, v40, v41\nv_min_u32 v40, -2, v40\nglobal_store_dword v150, v40, s[66:67] sc1")
    A("s_barrier")
    spoll([(G, 4, 156, 0), (G+4, 4, 156, 1024)])
    A(f"ds_write_b128 v153, v[{G}:{G+3}]\nds_write_b128 v153, v[{G+4}:{G+7}] offset:1024\ns_waitcnt lgkmcnt(0)\ns_barrier")
    stamp(7)
    spoll([(G+4*i, 4, 151, 1024*i) for i in range(4)])
    sum4_cvt()
    for k in range(4): A(f"v_mov_b32 v{G+16+k}, v{G+k}")
    A("s_nop 1")
    for k in range(4): A(f"v_permlane16_swap_b32 v{G+k}, v{G+16+k}")
    A("s_nop 1")
    for k in range(4): A(f"v_add_f32 v{G+k}, v{G+k}, v{G+16+k}")
    A("s_nop 1")
    for k in range(4): A(f"v_add_f32_dpp v{G+k}, v{G+k}, v{G+k} row_ror:8 row_mask:0xf bank_mask:0xf")
    A(f"v_cvt_pk_bf16_f32 v{G}, v{G}, v{G+1}\nv_cvt_pk_bf16_f32 v{G+1}, v{G+2}, v{G+3}\ns_mov_b64 exec, 0xff\nglobal_store_dwordx2 v143, v[{G}:{G+1}], s[62:63]")
    if ep: A(f"s_cmp_lg_u32 s2, 0\ns_cbranch_scc1 L_noep\ns_mov_b64 exec, 1\nv_mov_b32 v1, {EPO:#x}\nv_mov_b32 v2, s79\nglobal_store_dword v1, v2, s[66:67] sc1\nL_noep:")
    if stamps:
        A("s_memrealtime s[96:97]\ns_waitcnt lgkmcnt(0)\ns_mov_b64 exec, 1\ns_lshl_b32 s19, s2, 5\nv_mov_b32 v1, s19")
        for i, r in enumerate((80, 82, 84, 86, 88, 92, 94, 96)): A(f"v_mov_b32 v{4+i}, s{r}")
        A("global_store_dwordx4 v1, v[4:7], s[66:67]\nglobal_store_dwordx4 v1, v[8:11], s[66:67] offset:16")
    A("L_end:\ns_endpgm")
    o.append(f'.section .rodata,"a"\n.p2align 6\n.amdhsa_kernel {NAME}_kernel\n  .amdhsa_next_free_vgpr 256\n  .amdhsa_next_free_sgpr 100\n  .amdhsa_accum_offset 256')
    o.append("  .amdhsa_group_segment_fixed_size 0\n  .amdhsa_kernarg_size 112\n  .amdhsa_user_sgpr_count 2\n  .amdhsa_user_sgpr_kernarg_segment_ptr 1\n  .amdhsa_system_sgpr_workgroup_id_x 1\n.end_amdhsa_kernel")
    open(fn, "w").write("\n".join(o) + "\n")
if __name__ == "__main__":
    gen(f"cdna_kernels/{NAME}.s", hmap=0, LOOK=4, NBT=(6,2,6,2,6,2,6,2), NBT2=(4,4,4,4,4,4,4,4), W2=3)
    gen("k_st.s", stamps=True)
    for a in sys.argv[1:]:
        nm, kw = a.split(":", 1)
        gen(f"exp/{nm}.s", **eval(f"dict({kw})"))
```

```python
import sys, math, struct
NAME = "gated_mix__mha_block_cached__gqa_block_cached__decode"
HDR = open("cdna_kernels/%s.s.ref" % NAME).read().split("; Override")[0]
def f2u(x): return struct.unpack("<I", struct.pack("<f", x))[0]
QPA, QPB, QBF, PBO, PBML, MA, MB, GT, H2 = 0x100000, 0x200000, 0x300000, 0x400000, 0x500000, 0x600000, 0x610000, 0x620000, 0x700000
STG = 131072; BPART = STG; BML = 147456; AM = 147712; QA = 149888; QB = 150144; OA = 152192; OB = 154240; LG = 156288
NT = 36
FLGW, FMAG = 0xE0000, 0x5A5A5A00
def gen(fn, e2=0, pre=0, wf=1, NBT2=None, W2=2, PFN=0, PFS=6, pfpol="", EPO=0xF0000, lc=0, pp=0, ep=1, PW=0, st2=0, LOOK=2, NBT=(4,4,4,4,4,4,4,4), hmap=1, prio=3, NA1=16, NB=40, qpol=" nt", H=4, stamps=False, nt=" nt", wnt=" nt", sleep=0):
    o = []
    SL = f"s_sleep {sleep}\n" if sleep else ""
    def A(s):
        for l in s.split("\n"): o.append("    " + l.strip() if not l.strip().endswith(":") else l.strip())
    lab = [0]
    def L(p): lab[0] += 1; return f"L_{p}{lab[0]}"
    def stamp(i, early=0):
        if stamps and (early == st2 or i not in (2, 3, 4)): A(f"s_memrealtime s[{80+2*i}:{81+2*i}]")
    o.append(HDR + "; @launch grid=(256,1,1) block=(512,1,1) lds=163840")
    o.append('.amdgcn_target "amdgcn-amd-amdhsa--gfx950"\n.text')
    o.append(f".globl {NAME}_kernel\n.p2align 8\n.type {NAME}_kernel,@function\n{NAME}_kernel:")
    A("s_cmp_ge_u32 s2, 256\ns_cbranch_scc1 L_end")
    A("s_load_dwordx16 s[40:55], s[0:1], 0\ns_load_dwordx8 s[56:63], s[0:1], 64\ns_load_dwordx4 s[64:67], s[0:1], 96")
    stamp(0)
    A("v_lshrrev_b32 v1, 6, v0\nv_and_b32 v0, 63, v0\nv_readfirstlane_b32 s3, v1")
    A("s_lshr_b32 s4, s2, 5\ns_and_b32 s5, s2, 31" if hmap == 0 else "s_lshr_b32 s4, s2, 5\ns_and_b32 s5, s2, 7\ns_lshl_b32 s5, s5, 2\ns_bfe_u32 s6, s2, 0x20003\ns_add_u32 s5, s5, s6")
    A("s_lshr_b32 s6, s5, 3\ns_and_b32 s7, s5, 7")
    A(f"s_mov_b32 s72, {f2u(128**-0.5*math.log2(math.e)):#x}")
    A("v_lshrrev_b32 v1, 4, v0\nv_and_b32 v2, 15, v0\nv_lshlrev_b32 v3, 1, v1\nv_xor_b32 v3, v3, v2\nv_lshlrev_b32 v3, 4, v3")
    A("s_mov_b32 s11, 0x20000\ns_mov_b32 s15, 0x20000\ns_mov_b32 s27, 0x20000\ns_mov_b32 s35, 0x20000")
    A("s_lshl_b32 s19, s5, 3\ns_add_u32 s19, s19, s4\ns_lshl_b32 s76, s19, 8")
    A("s_lshl_b32 s19, s4, 5\ns_add_u32 s19, s19, s5\ns_lshl_b32 s78, s19, 8")
    A("v_lshlrev_b32 v6, 4, v0\nv_lshlrev_b32 v7, 2, v0")
    A("s_cmp_ge_u32 s3, 4\ns_cbranch_scc1 L_ctrl")
    XW, YO = (4096, 16384) if H == 4 else (8192, 4096)
    A("v_lshl_add_u32 v4, v1, 8, v3\nv_xor_b32 v5, 0x80, v4")
    A("s_lshl_b32 s21, s3, 15")
    A(f"s_lshl_b32 s16, s4, 5\ns_add_u32 s16, s16, s5\ns_lshl_b32 s16, s16, 20\ns_mul_i32 s19, s3, {XW}\ns_add_u32 s16, s16, s19\ns_add_u32 s17, s16, {YO}")
    def packs(N):
        stp = [sum(N[:c]) for c in range(8)]
        assert sum(N) == 32 and all(n % 2 == 0 and 2 <= n <= 14 for n in N)
        return sum(n << (4*c) for c, n in enumerate(N)), sum(v << (8*c) for c, v in enumerate(stp))
    nbp, sp = packs(NBT); nbp2, sp2 = packs(NBT2 or NBT)
    A(f"s_mov_b32 s39, {nbp:#x}\ns_mov_b32 s36, {sp & 0xffffffff:#x}\ns_mov_b32 s37, {sp >> 32:#x}\ns_cmp_ge_u32 s3, {W2}\ns_cmov_b32 s39, {nbp2:#x}\ns_cmov_b32 s36, {sp2 & 0xffffffff:#x}\ns_cmov_b32 s37, {sp2 >> 32:#x}")
    A(f"s_lshl_b32 s23, s7, 2\ns_lshr_b32 s39, s39, s23\ns_and_b32 s39, s39, 15\ns_lshl_b32 s23, s7, 3\ns_lshr_b64 s[36:37], s[36:37], s23\ns_and_b32 s23, s36, 255\ns_lshl_b32 s23, s23, 15")
    A(f"s_lshl_b32 s22, s4, 2\ns_add_u32 s22, s22, s6\ns_lshl_b32 s22, s22, 20\ns_add_u32 s22, s22, s23\ns_add_u32 s22, s22, s19")
    LT = LOOK // 2
    A(f"s_add_u32 s23, s39, 30\ns_add_u32 s39, s39, {NA1}\ns_sub_u32 s38, s39, {LT}\ns_mov_b32 s36, {NA1-LT}\ns_mov_b32 s37, {NA1}")
    A("s_waitcnt lgkmcnt(0)")
    A("s_mov_b32 s8, s42\ns_mov_b32 s9, s43\ns_mov_b32 s10, 0x10000000\ns_mov_b32 s12, s44\ns_mov_b32 s13, s45\ns_mov_b32 s14, 0x10000000")
    def issue_kv(isv, par, dx=0, win=0, pre=0):
        srd = "s[12:15]" if isv else "s[8:11]"
        for blk in range(2):
            A(f"s_add_u32 m0, s21, {par*16384 + isv*8192 + blk*4096}")
            so = f"s{16+blk}"
            if dx: A(f"s_add_u32 s19, s{16+blk}, {dx}"); so = "s19"
            else: A("s_nop 0")
            for t in range(4):
                if win and pre + blk*4 + t >= win: A(f"s_waitcnt vmcnt({win-1})")
                A(f"buffer_load_dwordx4 v{4+(t&1)}, {srd}, {so} offen offset:{t*1024}{nt} lds")
    def tagf(r, t): A(f"v_and_b32 v{r}, 0xff, v{r}\nv_add_u32 v{t}, 0xffffff02, v{r}\nv_min_u32 v{r}, v{r}, v{t}\nv_add_u32 v{r}, 1, v{r}")
    def clr4k(base, d=8, a=12):
        A(f"s_lshl_b32 s19, s78, 4\ns_add_u32 s19, s19, {base}\nv_add_u32 v{a}, s19, v6")
        for i in range(4): A(f"global_store_dwordx4 v{a}, v[{d}:{d+3}], s[66:67] offset:{i*1024} sc1")
    def clr1(sr, sh, base, ex, d=8, a=12):
        A(f"s_lshr_b32 s19, {sr}, {sh}\ns_add_u32 s19, s19, {base}\nv_add_u32 v{a}, s19, v7\ns_mov_b64 exec, {ex}\nglobal_store_dword v{a}, v{d}, s[66:67] sc1\ns_mov_b64 exec, -1")
    def clears(w0, d, a, c):
        for k in range(4): A(f"v_mov_b32 v{d+k}, -1")
        A(f"s_sub_u32 s19, s3, {w0}\ns_cmp_ge_u32 s19, 2\ns_cbranch_scc1 L_noclr")
        if e2 and wf and not lc: A(f"v_mov_b32 v22, {EPO:#x}\nglobal_load_dword v22, v22, s[66:67] sc1")
        A("s_cmp_eq_u32 s19, 1\ns_cbranch_scc1 L_clr1")
        clr4k(QPB, d, a); clr1("s76", 0, MA, -1, d, a); clr1("s76", 0, MB, -1, d, a); clr1("s76", 5, GT, 3, d, a)
        A("s_branch L_clr2\nL_clr1:")
        clr4k(H2, d, a); clr4k(PBO, d, a); clr1("s78", 0, QBF, -1, d, a); clr1("s78", 2, PBML, 0xffff, d, a)
        A("L_clr2:" if lc else "L_clr2:\nL_noclr:")
        if wf: A(f"s_lshr_b32 s19, s78, 5\ns_lshl_b32 s20, s3, 2\ns_add_u32 s19, s19, s20\ns_add_u32 s19, s19, {FLGW-4*w0}\nv_mov_b32 v{c}, s19")
        else: A(f"s_lshl_b32 s19, s4, 2\ns_add_u32 s19, s19, 128\nv_mov_b32 v{c}, s19\nv_mov_b32 v{c-1}, 1")
        if lc and wf: A(f"v_or_b32 v{c-1}, {FMAG:#x}, v9\ns_waitcnt vmcnt(0)\ns_mov_b64 exec, 1\nglobal_store_dword v{c}, v{c-1}, s[66:67] sc1\ns_mov_b64 exec, -1")
        elif lc: A(f"s_waitcnt vmcnt(0)\ns_mov_b64 exec, 1\nglobal_atomic_add v{c}, v{c-1}, s[64:65]\ns_mov_b64 exec, -1")
        if lc: A("L_noclr:")
    assert ep or not wf
    if wf and not lc and not e2: A(f"v_mov_b32 v22, {EPO:#x}\nglobal_load_dword v22, v22, s[66:67] sc1")
    if not lc: clears(0, 8, 12, 23)
    issue_kv(0, 0, 0, PW, 0)
    A("s_barrier")
    issue_kv(1, 0, 0, PW, 8); issue_kv(0, 1, 32768, PW, 16); issue_kv(1, 1, 32768, PW, 24)
    A("v_and_b32 v6, 7, v2\nv_lshlrev_b32 v6, 1, v6\nv_xor_b32 v6, v6, v1\nv_lshlrev_b32 v6, 4, v6\nv_lshl_add_u32 v6, v2, 8, v6\nv_add_u32 v8, s21, v6")
    for j in range(1, 4): A(f"v_xor_b32 v{8+j}, {j*64}, v8")
    A("v_lshrrev_b32 v6, 2, v2\nv_lshl_add_u32 v6, v1, 2, v6\nv_and_b32 v7, 7, v6\nv_lshlrev_b32 v7, 5, v7\nv_lshl_add_u32 v6, v6, 8, v7\nv_and_b32 v7, 3, v0\nv_lshl_add_u32 v6, v7, 3, v6\nv_add_u32 v6, s21, v6\nv_add_u32 v12, 8192, v6")
    for db in range(1, 8): A(f"v_xor_b32 v{12+db}, {db*32}, v12")
    A(f"v_lshlrev_b32 v20, 4, v1\nv_and_b32 v21, 7, v0\nv_lshl_add_u32 v21, v21, 8, v20")
    A("s_add_u32 s16, s16, 65536\ns_add_u32 s17, s17, 65536")
    Q, KF, VF, S, P, ACC, SAV = 24, 40, 72, 104, 112, 116, 152
    M, LS, T0, T1, T2, MC = 148, 149, 150, 151, 186, 187
    def init_state():
        for i in range(32): A(f"v_mov_b32 v{ACC+i}, 0")
        A(f"v_mov_b32 v{M}, 0xff7fffff\nv_mov_b32 v{LS}, 0")
    def load_q(addr, base):
        for j in range(4): A(f"ds_read_b128 v[{Q+4*j}:{Q+4*j+3}], v{addr} offset:{base+64*j}")
    init_state()
    if wf and not lc:
        A("s_waitcnt vmcnt(32)\ns_cmp_ge_u32 s3, 2\ns_cbranch_scc1 L_nosig")
        tagf(22, 24)
        A(f"v_or_b32 v22, {FMAG:#x}, v22\ns_mov_b64 exec, 1\nglobal_store_dword v23, v22, s[66:67] sc1\ns_mov_b64 exec, -1\ns_nop 1\nL_nosig:")
    elif not lc: A("s_cmp_ge_u32 s3, 2\ns_cbranch_scc1 L_nosig\ns_waitcnt vmcnt(32)\ns_mov_b64 exec, 1\nglobal_atomic_add v23, v22, s[64:65]\ns_mov_b64 exec, -1\ns_nop 1\nL_nosig:")
    A(f"v_add_u32 v22, {QA}, v20\nv_add_u32 v23, {QB}, v21")
    A("s_barrier")
    load_q(22, 0)
    def issue_wo(isv, par):
        A(f"s_mov_b32 s24, s{58 if isv else 48}\ns_mov_b32 s25, s{59 if isv else 49}\ns_mov_b32 s26, 0x800000")
        for t in range(8):
            A(f"s_add_u32 m0, s21, {par*16384 + isv*8192 + t*1024}\ns_add_u32 s19, s18, {t*8192}")
            A(f"buffer_load_dwordx4 v{6+(t&1)}, s[24:27], s19 offen{wnt} lds")
    def xlane(op, r):
        for sw in ("v_permlane32_swap_b32", "v_permlane16_swap_b32"):
            A(f"v_mov_b32 v{T1}, v{r}\ns_nop 1\n{sw} v{r}, v{T1}\ns_nop 1\n{op} v{r}, v{r}, v{T1}")
    def tile(par, kvp, wo, vw):
        po = par * 16384
        A(f"s_waitcnt vmcnt({vw[0]})")
        for blk in range(2):
            for j in range(4):
                A(f"ds_read_b128 v[{KF+16*blk+4*j}:{KF+16*blk+4*j+3}], v{8+j} offset:{po+blk*4096}")
        A("s_waitcnt lgkmcnt(0)")
        if kvp is not None: issue_kv(0, kvp)
        if wo: issue_wo(0, par)
        for j in range(4):
            for blk in range(2):
                c = "0" if j == 0 else f"v[{S+4*blk}:{S+4*blk+3}]"
                A(f"v_mfma_f32_16x16x32_bf16 v[{S+4*blk}:{S+4*blk+3}], v[{KF+16*blk+4*j}:{KF+16*blk+4*j+3}], v[{Q+4*j}:{Q+4*j+3}], {c}")
        A(f"s_waitcnt vmcnt({vw[1]})")
        for db in range(8):
            for blk in range(2):
                A(f"ds_read_b64_tr_b16 v[{VF+4*db+2*blk}:{VF+4*db+2*blk+1}], v{12+db} offset:{po+blk*4096}")
        A(f"v_max3_f32 v{T0}, v{S}, v{S+1}, v{S+2}\nv_max3_f32 v{T2}, v{S+3}, v{S+4}, v{S+5}\nv_max3_f32 v{T0}, v{T0}, v{S+6}, v{S+7}\nv_max3_f32 v{T0}, v{T0}, v{T2}, v{M}")
        xlane("v_max_f32", T0)
        sk = L("sk")
        A(f"v_cmp_neq_f32 vcc, v{T0}, v{M}\nv_mul_f32 v{MC}, s72, v{T0}\ns_cbranch_vccz {sk}")
        A(f"v_sub_f32 v{T2}, v{M}, v{T0}\nv_mul_f32 v{T2}, s72, v{T2}\nv_exp_f32 v{T2}, v{T2}\nv_mov_b32 v{M}, v{T0}\nv_mul_f32 v{LS}, v{LS}, v{T2}")
        for i in range(32): A(f"v_mul_f32 v{ACC+i}, v{ACC+i}, v{T2}")
        A(f"{sk}:")
        for i in range(8): A(f"v_fma_f32 v{S+i}, v{S+i}, s72, -v{MC}")
        for i in range(8): A(f"v_exp_f32 v{S+i}, v{S+i}")
        A(f"v_add_f32 v{T0}, v{S}, v{S+1}\nv_add_f32 v{T2}, v{S+2}, v{S+3}")
        for i in range(4): A(f"v_cvt_pk_bf16_f32 v{P+i}, v{S+2*i}, v{S+2*i+1}")
        A(f"v_add_f32 v{T0}, v{T0}, v{S+4}\nv_add_f32 v{T2}, v{T2}, v{S+5}\nv_add_f32 v{T0}, v{T0}, v{S+6}\nv_add_f32 v{T2}, v{T2}, v{S+7}\nv_add_f32 v{LS}, v{LS}, v{T0}\nv_add_f32 v{LS}, v{LS}, v{T2}")
        A("s_waitcnt lgkmcnt(0)")
        if kvp is not None:
            issue_kv(1, kvp); A("s_add_u32 s16, s16, 32768\ns_add_u32 s17, s17, 32768")
        if wo: issue_wo(1, par)
        for db in range(8):
            A(f"v_mfma_f32_16x16x32_bf16 v[{ACC+4*db}:{ACC+4*db+3}], v[{VF+4*db}:{VF+4*db+3}], v[{P}:{P+3}], v[{ACC+4*db}:{ACC+4*db+3}]")
    def lstamp():
        if stamps: A("s_memrealtime s[80:81]\ns_lshl_b32 s19, s2, 9\ns_lshl_b32 s82, s3, 7\ns_add_u32 s19, s19, s82\ns_lshl_b32 s82, s20, 1\ns_add_u32 s19, s19, s82\ns_add_u32 s19, s19, 0x10000\nv_mov_b32 v188, s19\ns_waitcnt lgkmcnt(0)\nv_mov_b32 v189, s80\nglobal_store_dword v188, v189, s[66:67]")
    def ev(sreg, nm): A(f"s_cmp_eq_u32 s20, s{sreg}\ns_cbranch_scc1 L_ev{nm}\nL_r{nm}:")
    if LOOK == 4:
        A("s_mov_b32 s20, 0\nL_loop:"); lstamp()
        ev(36, "IB"); ev(37, "B0"); ev(38, "IA"); ev(39, "B1")
        tile(0, 0, 0, (24, 24)); tile(1, 1, 0, (24, 24))
        A("s_add_u32 s20, s20, 2")
    else:
        tile(0, None, 0, (24, 16)); tile(1, 0, 0, (8, 8))
        A("s_mov_b32 s20, 2\nL_loop:"); lstamp()
        ev(37, "B0"); ev(39, "B1")
        tile(0, 1, 0, (8, 8))
        A("s_add_u32 s20, s20, 1")
        ev(36, "IB"); ev(38, "IA")
        tile(1, 0, 0, (8, 8))
        A("s_add_u32 s20, s20, 1")
    A("s_cmp_lt_u32 s20, s23\ns_cbranch_scc1 L_loop")
    lstamp()
    A("v_lshl_add_u32 v6, v1, 11, v3\nv_xor_b32 v7, 0x80, v6")
    A("s_lshl_b32 s18, s5, 18\ns_lshl_b32 s19, s3, 16\ns_add_u32 s18, s18, s19\ns_lshl_b32 s19, s4, 8\ns_add_u32 s18, s18, s19")
    if LOOK == 4: tile(0, None, 1, (24, 24)); tile(1, None, 0, (24, 16))
    else: tile(0, 1, 1, (8, 16)); tile(1, None, 0, (24, 8))
    xlane("v_add_f32", LS)
    A(f"s_mul_i32 s19, s3, 544\ns_add_u32 s19, s19, {AM}\nv_add_u32 v22, s19, v20\nv_mov_b32 v23, s19\nv_cmp_eq_u32 vcc, 0, v2\ns_nop 4\ns_and_saveexec_b64 s[68:69], vcc")
    for db in range(8): A(f"ds_write_b128 v22, v[{ACC+4*db}:{ACC+4*db+3}] offset:{db*64}")
    A(f"ds_write_b64 v23, v[{M}:{LS}] offset:512\ns_mov_b64 exec, s[68:69]\ns_waitcnt lgkmcnt(0)\ns_barrier")
    A("v_lshrrev_b32 v22, 2, v2\nv_lshl_add_u32 v23, v1, 3, v22\nv_lshlrev_b32 v23, 8, v23\nv_and_b32 v32, 3, v0\nv_lshl_add_u32 v23, v32, 3, v23")
    A("s_lshl_b32 s19, s3, 1\nv_xor_b32 v22, s19, v22\nv_lshl_add_u32 v24, v22, 5, v23\nv_xor_b32 v25, 0x80, v24\nv_add_u32 v25, 1024, v25\nv_xor_b32 v26, 32, v24\nv_xor_b32 v27, 32, v25")
    for i in range(4): A(f"v_add_u32 v{28+i}, 0x10000, v{24+i}")
    A(f"v_add_u32 v32, {OA}, v21\nv_and_b32 v33, 7, v0\nv_lshlrev_b32 v33, 3, v33\nv_add_u32 v33, {LG}, v33")
    A(f"s_lshl_b32 s19, s4, 5\ns_add_u32 s19, s19, s3\ns_lshl_b32 s19, s19, 5\ns_add_u32 s19, s19, s5\ns_lshl_b32 s19, s19, 7\ns_add_u32 s19, s19, {H2}\nv_lshlrev_b32 v34, 14, v2\nv_add3_u32 v34, v34, v20, s19")
    A("s_waitcnt vmcnt(0)\ns_barrier")
    WF = 40
    for br in range(2):
        for cb in range(2):
            for s in range(4):
                r = WF + ((br*2+cb)*4+s)*4
                for xy in range(2):
                    A(f"ds_read_b64_tr_b16 v[{r+2*xy}:{r+2*xy+1}], v{24+4*(s>>1)+2*cb+xy} offset:{(s&1)*32768+br*8192}")
    OF = 116
    for s in range(4): A(f"ds_read_b128 v[{OF+16+4*s}:{OF+16+4*s+3}], v32 offset:{2048+64*s}")
    A("ds_read_b64 v[36:37], v33\ns_waitcnt lgkmcnt(0)")
    for s in range(4):
        for cb in range(2):
            r = WF + ((2+cb)*4+s)*4; c = "0" if s == 0 else f"v[{160+4*cb}:{163+4*cb}]"
            A(f"v_mfma_f32_16x16x32_bf16 v[{160+4*cb}:{163+4*cb}], v[{r}:{r+3}], v[{OF+16+4*s}:{OF+16+4*s+3}], {c}")
    A("s_barrier")
    for s in range(4): A(f"ds_read_b128 v[{OF+4*s}:{OF+4*s+3}], v32 offset:{64*s}")
    for i in range(8): A(f"v_mul_f32 v{160+i}, v37, v{160+i}")
    A("v_cmp_gt_u32 vcc, 8, v2\ns_waitcnt lgkmcnt(0)")
    for s in range(4):
        for cb in range(2):
            r = WF + (cb*4+s)*4; c = "0" if s == 0 else f"v[{152+4*cb}:{155+4*cb}]"
            A(f"v_mfma_f32_16x16x32_bf16 v[{152+4*cb}:{155+4*cb}], v[{r}:{r+3}], v[{OF+4*s}:{OF+4*s+3}], {c}")
    A("s_and_saveexec_b64 s[68:69], vcc\ns_nop 7")
    for i in range(8): A(f"v_fma_f32 v{160+i}, v36, v{152+i}, v{160+i}")
    for i in range(8): A(f"v_min_u32 v{160+i}, -2, v{160+i}")
    A("global_store_dwordx4 v34, v[160:163], s[66:67] sc1\nglobal_store_dwordx4 v34, v[164:167], s[66:67] offset:64 sc1\ns_endpgm")
    A("L_evIB:\ns_mov_b32 s18, s16\ns_mov_b32 s16, s22\n" + f"s_add_u32 s17, s16, {YO}\n" + "s_mov_b32 s8, s52\ns_mov_b32 s9, s53\ns_mov_b32 s10, 0x2000000\ns_mov_b32 s12, s54\ns_mov_b32 s13, s55\ns_mov_b32 s14, 0x2000000\ns_branch L_rIB")
    A("L_evIA:\ns_mov_b32 s16, s18\n" + f"s_add_u32 s17, s16, {YO}\n" + "s_mov_b32 s8, s42\ns_mov_b32 s9, s43\ns_mov_b32 s10, 0x10000000\ns_mov_b32 s12, s44\ns_mov_b32 s13, s45\ns_mov_b32 s14, 0x10000000\ns_branch L_rIA")
    A("L_evB0:\ns_barrier")
    load_q(23, 0)
    A("s_nop 7")
    for i in range(34): A(f"v_mov_b32 v{SAV+i}, v{ACC+i}")
    init_state()
    A("s_branch L_rB0")
    A("L_evB1:")
    xlane("v_add_f32", LS)
    A(f"s_lshl_b32 s19, s3, 12\ns_add_u32 s19, s19, {BPART}\nv_lshl_add_u32 v{T0}, v2, 9, v20\nv_add_u32 v{T0}, s19, v{T0}\ns_lshl_b32 s19, s3, 6\ns_add_u32 s19, s19, {BML}\nv_lshlrev_b32 v{T1}, 3, v2\nv_add_u32 v{T1}, s19, v{T1}\nv_cmp_gt_u32 vcc, 8, v2\ns_and_saveexec_b64 s[68:69], vcc")
    for db in range(8): A(f"ds_write_b128 v{T0}, v[{ACC+4*db}:{ACC+4*db+3}] offset:{db*64}")
    A(f"ds_write_b64 v{T1}, v[{M}:{LS}]\ns_mov_b64 exec, s[68:69]")
    load_q(22, 0)
    A("s_waitcnt lgkmcnt(0)\ns_barrier")
    for i in range(34): A(f"v_mov_b32 v{ACC+i}, v{SAV+i}")
    A("s_branch L_rB1")
    A("L_ctrl:")
    if prio: A(f"s_setprio {prio}")
    FLG = LG + 64
    G = 112
    XR, SEL, QAC, TT, WA = 24, 40, 48, 64, 192
    A("s_sub_u32 s3, s3, 4")
    A("v_lshlrev_b32 v4, 16, v1\nv_lshl_add_u32 v4, v2, 4, v4\nv_lshrrev_b32 v5, 3, v2\nv_lshlrev_b32 v5, 11, v5\nv_lshl_add_u32 v5, v1, 4, v5")
    A("s_lshl_b32 s18, s4, 20\ns_lshl_b32 s19, s3, 18\ns_add_u32 s18, s18, s19\ns_lshl_b32 s19, s5, 8\ns_add_u32 s18, s18, s19")
    A("s_lshl_b32 s16, s4, 8\ns_lshl_b32 s19, s3, 6\ns_add_u32 s16, s16, s19")
    A("s_waitcnt lgkmcnt(0)")
    A("s_mov_b32 s24, s46\ns_mov_b32 s25, s47\ns_mov_b32 s26, 0x800000\ns_mov_b32 s32, s40\ns_mov_b32 s33, s41\ns_mov_b32 s34, 16384")
    if ep: A(f"v_mov_b32 v9, {EPO:#x}\ns_movk_i32 s28, 0xff\nglobal_load_dword v9, v9, s[66:67] sc1")
    else:
        A("s_cmp_lg_u32 s3, 0\ns_cbranch_scc1 L_h1\nv_mov_b32 v8, -1\nv_mov_b32 v9, -1\nv_mov_b32 v10, -1\nv_mov_b32 v11, -1")
        clr4k(QPA)
        A("L_h1:")
    for p_ in range(4): A(f"s_add_u32 s19, s16, {4096*p_}\nbuffer_load_dwordx4 v[{XR+4*p_}:{XR+4*p_+3}], v5, s[32:35], s19 offen")
    def wloads():
        for i in range(8): A(f"s_add_u32 s19, s18, {i*8192}\nbuffer_load_dwordx4 v[{WA+4*i}:{WA+4*i+3}], v4, s[24:27], s19 offen{qpol}")
    wloads()
    A("v_and_b32 v48, 1, v2\nv_cmp_eq_u32 vcc, 1, v48\nv_bfe_u32 v49, v2, 1, 2")
    for p_ in range(2):
        A(f"v_mov_b32 v50, {0x0c0c0000 | ((2*p_+1) << 8) | (2*p_):#x}\nv_mov_b32 v51, {((2*p_+1) << 24) | ((2*p_) << 16) | 0x0c0c:#x}\nv_cndmask_b32 v{52+p_}, v50, v51, vcc")
    A("v_mov_b32 v50, 0x0c0c0c0c")
    for d in range(4):
        A(f"v_cmp_eq_u32 vcc, {d}, v49")
        for p_ in range(2): A(f"v_cndmask_b32 v{SEL+4*p_+d}, v50, v{52+p_}, vcc")
    A("v_cmp_gt_u32 s[70:71], 8, v2\nv_cmp_gt_u32 s[74:75], 32, v0")
    A(f"v_add_u32 v15, {FLG}, v7\nv_mov_b32 v16, 0\ns_mov_b64 exec, 0xffff\nds_write_b32 v15, v16\ns_mov_b64 exec, -1\ns_waitcnt lgkmcnt(0)\ns_barrier")
    A(f"s_lshl_b32 s19, s3, 12\ns_add_u32 s19, s19, {STG}\nv_lshrrev_b32 v14, 1, v1\nv_lshlrev_b32 v14, 9, v14\nv_lshl_add_u32 v14, v2, 5, v14\nv_and_b32 v16, 1, v1\nv_lshl_add_u32 v14, v16, 4, v14\nv_add_u32 v14, s19, v14")
    A(f"s_lshl_b32 s19, s3, 10\ns_add_u32 s19, s19, {STG}\nv_add_u32 v13, s19, v6")
    A("s_lshl_b32 s19, s3, 18\ns_lshl_b32 s17, s5, 12\ns_add_u32 s19, s19, s17\ns_lshl_b32 s17, s4, 9\ns_add_u32 s19, s19, s17\nv_lshrrev_b32 v12, 5, v0\nv_lshlrev_b32 v12, 17, v12\nv_and_b32 v16, 31, v0\nv_lshl_add_u32 v12, v16, 4, v12\nv_add_u32 v12, s19, v12")
    A("s_lshl_b32 s19, s5, 2\nv_mov_b32 v11, s19\ns_waitcnt vmcnt(8)")
    if ep: tagf(9, 10); A("s_nop 0\nv_readfirstlane_b32 s79, v9")
    else: A("s_cmp_lg_u32 s3, 0\ns_cbranch_scc1 L_h2\nv_mov_b32 v10, 1\ns_mov_b64 exec, 1\nglobal_atomic_add v11, v10, s[64:65]\ns_mov_b64 exec, -1\ns_branch L_h2b\nL_h2:\nbuffer_load_dword v10, v5, s[32:35], s16 offen\nL_h2b:")
    stamp(2, 1)
    for i in range(8):
        for p_ in range(4):
            for d in range(4): A(f"v_perm_b32 v{TT+16*i+4*p_+d}, v{XR+4*p_+(i>>1)}, v{XR+4*p_+(i>>1)}, v{SEL+4*(i&1)+d}")
    def qgemm(newer):
        for i in range(8):
            A(f"s_waitcnt vmcnt({7-i+newer})")
            for p_ in range(4):
                ac = QAC + 4*p_; c = "0" if i == 0 else f"v[{ac}:{ac+3}]"
                A(f"v_mfma_f32_16x16x32_bf16 v[{ac}:{ac+3}], v[{TT+16*i+4*p_}:{TT+16*i+4*p_+3}], v[{WA+4*i}:{WA+4*i+3}], {c}")
        A("s_nop 7")
        for p_ in range(4): A(f"ds_write_b128 v14, v[{QAC+4*p_}:{QAC+4*p_+3}] offset:{1024*p_}")
        A("s_waitcnt lgkmcnt(0)")
    def hsync(fo):
        lp = L("fl"); dn = L("fd")
        A(f"s_lshl_b32 s19, s3, 2\ns_add_u32 s19, s19, {FLG+4*fo}\nv_mov_b32 v17, s19\nv_mov_b32 v16, 1\nds_write_b32 v17, v16")
        A(f"s_mov_b32 s77, 0x100000\n{lp}:\nds_read_b32 v16, v15\ns_waitcnt lgkmcnt(0)\nv_cmp_eq_u32 vcc, 0, v16\ns_and_b32 s19, vcc_lo, {0xf << fo:#x}\ns_cbranch_scc0 {dn}\ns_sub_u32 s77, s77, 1\ns_cmp_lg_u32 s77, 0\ns_cbranch_scc1 {lp}\n{dn}:")
    def qred():
        for w in range(4): A(f"ds_read_b128 v[{QAC+4*w}:{QAC+4*w+3}], v13 offset:{4096*w}")
        A("s_waitcnt lgkmcnt(0)")
        for k in range(4): A(f"v_add_f32 v{QAC+k}, v{QAC+k}, v{QAC+4+k}\nv_add_f32 v{QAC+8+k}, v{QAC+8+k}, v{QAC+12+k}")
        for k in range(4): A(f"v_add_f32 v{QAC+k}, v{QAC+k}, v{QAC+8+k}")
        for k in range(4): A(f"v_min_u32 v{QAC+k}, -2, v{QAC+k}")
    def cwait(val, creg, areg):
        lp = L("cw"); dn = L("cd")
        A(f"s_waitcnt vmcnt(0)\ns_mov_b32 s77, 0x8000\n{lp}:\nv_cmp_ne_u32 vcc, {val}, v{creg}\ns_cbranch_vccz {dn}\nglobal_load_dword v{creg}, v{areg}, s[64:65] sc1\ns_waitcnt vmcnt(0)\ns_sub_u32 s77, s77, 1\ns_cmp_lg_u32 s77, 0\ns_cbranch_scc1 {lp}\n{dn}:")
    def spoll(loads, t=110, tag=None, full=0):
        lp = L("sp"); dn = L("sd")
        A(f"s_mov_b32 s77, 0x8000\n{lp}:")
        regs = []
        for d, n, ar, off in loads:
            A(f"global_load_dwordx{n} v[{d}:{d+n-1}], v{ar}, s[66:67] offset:{off} sc1"); regs += list(range(d, d+n))
        A("s_waitcnt vmcnt(0)")
        if tag is not None:
            A(f"v_xor_b32 v{t}, v{tag}, v{regs.pop()}")
            while len(regs) >= 2: A(f"v_xor_b32 v{t+1}, v{tag}, v{regs.pop()}\nv_xor_b32 v{t+2}, v{tag}, v{regs.pop()}\nv_or3_b32 v{t}, v{t}, v{t+1}, v{t+2}")
            if regs: A(f"v_xor_b32 v{t+1}, v{tag}, v{regs.pop()}\nv_or_b32 v{t}, v{t}, v{t+1}")
            if not full: A(f"v_and_b32 v{t}, 0xff, v{t}")
            A(f"v_cmp_ne_u32 vcc, 0, v{t}\ns_cbranch_vccz {dn}\ns_sub_u32 s77, s77, 1\ns_cmp_lg_u32 s77, 0\ns_cbranch_scc1 {lp}\n{dn}:")
            return
        A(f"v_max3_u32 v{t}, v{regs.pop()}, v{regs.pop()}, v{regs.pop()}")
        while len(regs) >= 2: A(f"v_max3_u32 v{t}, v{t}, v{regs.pop()}, v{regs.pop()}")
        if regs: A(f"v_max_u32 v{t}, v{t}, v{regs.pop()}")
        A(f"v_cmp_eq_u32 vcc, -1, v{t}\ns_cbranch_vccz {dn}\n{SL}s_sub_u32 s77, s77, 1\ns_cmp_lg_u32 s77, 0\ns_cbranch_scc1 {lp}\n{dn}:")
    def sum4_cvt(G=G):
        for k in range(4): A(f"v_add_f32 v{G+k}, v{G+k}, v{G+4+k}\nv_add_f32 v{G+8+k}, v{G+8+k}, v{G+12+k}")
        for k in range(4): A(f"v_add_f32 v{G+k}, v{G+k}, v{G+8+k}")
        for k in range(4): A(f"v_mov_b32 v{G+16+k}, v{G+k}")
        A("s_nop 1")
        for k in range(4): A(f"v_permlane32_swap_b32 v{G+k}, v{G+16+k}")
        A("s_nop 1")
        for k in range(4): A(f"v_add_f32 v{G+k}, v{G+k}, v{G+16+k}")
    qgemm(0 if ep else 1)
    stamp(3, 1)
    if not ep:
        A("s_cmp_lg_u32 s3, 0\ns_cbranch_scc1 L_h3\nglobal_load_dword v10, v11, s[64:65] sc1")
        cwait(8, 10, 11)
        A("L_h3:")
    hsync(0)
    qred()
    if ep:
        for k in range(4): A(f"v_bfi_b32 v{QAC+k}, s28, v9, v{QAC+k}")
    A(f"v_add_u32 v16, {QPA}, v12\nglobal_store_dwordx4 v16, v[{QAC}:{QAC+3}], s[66:67] sc1")
    stamp(4, 1)
    A("s_mov_b32 s24, s56\ns_mov_b32 s25, s57\ns_cmp_lg_u32 s3, 0\ns_cbranch_scc1 L_noq")
    G2 = 224
    A(f"s_lshl_b32 s19, s78, 4\ns_add_u32 s19, s19, {QPA}\nv_add_u32 v16, s19, v6\nv_and_b32 v17, 31, v0\nv_lshlrev_b32 v17, 3, v17\nv_add_u32 v17, {QA}, v17")
    if pp:
        G3 = 192
        def pl(g):
            for i in range(4): A(f"global_load_dwordx4 v[{g+4*i}:{g+4*i+3}], v16, s[66:67] offset:{1024*i} sc1")
        def pchk(g, dn):
            A(f"s_waitcnt vmcnt(4)\nv_xor_b32 v18, v9, v{g}\nv_xor_b32 v19, v9, v{g+1}\nv_or_b32 v18, v18, v19")
            for k in range(2, 16, 2): A(f"v_xor_b32 v19, v9, v{g+k}\nv_xor_b32 v20, v9, v{g+k+1}\nv_or3_b32 v18, v18, v19, v20")
            A(f"v_and_b32 v18, 0xff, v18\nv_cmp_ne_u32 vcc, 0, v18\ns_cbranch_vccz {dn}")
        pl(G2)
        for _ in range(pp): A("s_nop 15")
        A("s_mov_b32 s77, 0x8000\nL_pp:")
        pl(G3); pchk(G2, "L_ppa"); pl(G2); pchk(G3, "L_ppb")
        A("s_sub_u32 s77, s77, 1\ns_cmp_lg_u32 s77, 0\ns_cbranch_scc1 L_pp\nL_ppb:")
        sum4_cvt(G3)
        A(f"v_cvt_pk_bf16_f32 v{G3}, v{G3}, v{G3+1}\nv_cvt_pk_bf16_f32 v{G3+1}, v{G3+2}, v{G3+3}\nds_write_b64 v17, v[{G3}:{G3+1}]\ns_branch L_ppj\nL_ppa:")
    else: spoll([(G2+4*i, 4, 16, 1024*i) for i in range(4)], 18, 9 if ep else None)
    sum4_cvt(G2)
    A(f"v_cvt_pk_bf16_f32 v{G2}, v{G2}, v{G2+1}\nv_cvt_pk_bf16_f32 v{G2+1}, v{G2+2}, v{G2+3}\nds_write_b64 v17, v[{G2}:{G2+1}]\nL_ppj:\ns_waitcnt lgkmcnt(0)\ns_barrier")
    stamp(1)
    if pp: A("s_waitcnt vmcnt(0)")
    wloads()
    A("s_branch L_q2\nL_noq:")
    if PFN:
        A(f"s_cmp_eq_u32 s3, 3\ns_cbranch_scc1 L_nopf\ns_lshl_b32 s19, s78, 12\ns_add_u32 s19, s19, 65536\nv_lshlrev_b32 v245, {PFS}, v0\nv_add_u32 v245, s19, v245")
        A("s_mov_b32 s30, s42\ns_mov_b32 s31, s43\ns_cmp_eq_u32 s3, 2\ns_cselect_b32 s30, s44, s30\ns_cselect_b32 s31, s45, s31")
        for i in range(PFN): A(f"global_load_dword v244, v245, s[30:31]{pfpol}\nv_add_u32 v245, {64 << PFS}, v245")
        A("L_nopf:")
    wloads()
    A("s_barrier\nL_q2:")
    qgemm(0)
    if lc: clears(1, 244, 248, 250)
    if wf:
        A(f"s_cmp_lg_u32 s3, 0\ns_cbranch_scc1 L_h4\nv_add_u32 v11, {FLGW}, v6\nv_or_b32 v10, {FMAG:#x}, v9")
        spoll([(G2, 4, 11, 0), (G2+4, 4, 11, 1024)], 18, 10, 1)
    else:
        A("s_cmp_lg_u32 s3, 0\ns_cbranch_scc1 L_h4\nv_and_b32 v11, 7, v0\nv_lshlrev_b32 v11, 2, v11\nv_add_u32 v11, 128, v11\nglobal_load_dword v10, v11, s[64:65] sc1")
        cwait(64, 10, 11)
    A("L_h4:")
    hsync(4)
    qred()
    A(f"v_add_u32 v16, {QPB}, v12\nglobal_store_dwordx4 v16, v[{QAC}:{QAC+3}], s[66:67] sc1")
    A("s_cmp_eq_u32 s3, 0\ns_cbranch_scc1 L_main\ns_endpgm\nL_main:")
    A("v_mov_b32 v108, v6\nv_and_b32 v144, 31, v0\nv_lshlrev_b32 v144, 3, v144")
    A(f"s_add_u32 s19, s76, {MA}\nv_add_u32 v150, s19, v7\ns_lshl_b32 s19, s78, 4\ns_add_u32 s19, s19, {H2}\nv_add_u32 v151, s19, v108")
    A("s_lshl_b32 s19, s4, 11\nv_lshlrev_b32 v152, 5, v0\nv_add_u32 v153, s19, v152")
    A("global_load_dwordx4 v[156:159], v153, s[40:41]\nglobal_load_dwordx4 v[160:163], v153, s[40:41] offset:16\nglobal_load_dwordx4 v[164:167], v152, s[60:61]\nglobal_load_dwordx4 v[168:171], v152, s[60:61] offset:16")
    A(f"s_lshl_b32 s19, s78, 4\ns_add_u32 s19, s19, {QPB}\nv_add_u32 v111, s19, v108")
    if pre:
        A("v_and_b32 v107, 7, v0\nv_lshlrev_b32 v106, 9, v107\nv_add_u32 v106, s19, v106")
        spoll([(G, 4, 106, 0)])
    spoll([(G+4*i, 4, 111, 1024*i) for i in range(4)])
    sum4_cvt()
    A(f"v_cvt_pk_bf16_f32 v{G}, v{G}, v{G+1}\nv_cvt_pk_bf16_f32 v{G+1}, v{G+2}, v{G+3}\nv_min_u32 v{G}, -2, v{G}\nv_min_u32 v{G+1}, -2, v{G+1}\ns_add_u32 s19, s78, {QBF}\nv_add_u32 v16, s19, v144")
    A(f"s_mov_b64 exec, s[74:75]\nglobal_store_dwordx2 v16, v[{G}:{G+1}], s[66:67] sc1\ns_mov_b64 exec, -1")
    stamp(2)
    A("v_mov_b32 v154, 0")
    for i in range(8):
        A(f"v_lshlrev_b32 v172, 16, v{156+i}\nv_lshlrev_b32 v173, 16, v{164+i}\nv_and_b32 v174, 0xffff0000, v{156+i}\nv_and_b32 v175, 0xffff0000, v{164+i}")
        A("v_mul_f32 v172, v172, v173\nv_mul_f32 v174, v174, v175\nv_cvt_pk_bf16_f32 v172, v172, v174\nv_lshlrev_b32 v173, 16, v172\nv_and_b32 v172, 0xffff0000, v172\nv_add_f32 v154, v154, v173\nv_add_f32 v154, v154, v172")
    for sh in (8, 4, 2, 1): A(f"s_nop 1\nv_add_f32_dpp v154, v154, v154 row_ror:{sh} row_mask:0xf bank_mask:0xf")
    for sw in ("v_permlane32_swap_b32", "v_permlane16_swap_b32"):
        A(f"v_mov_b32 v155, v154\ns_nop 1\n{sw} v154, v155\ns_nop 1\nv_add_f32 v154, v154, v155")
    def rnd(r): A(f"v_cvt_pk_bf16_f32 v{r}, v{r}, v{r}\nv_and_b32 v{r}, 0xffff0000, v{r}")
    rnd(154)
    A(f"v_mul_f32 v154, {f2u(-math.log2(math.e)):#x}, v154\nv_exp_f32 v154, v154\ns_nop 0\nv_add_f32 v154, 1.0, v154\nv_rcp_f32 v154, v154\ns_nop 0")
    rnd(154); A("v_sub_f32 v155, 1.0, v154"); rnd(155)
    A(f"s_and_b32 s19, s78, 0xfffff800\ns_add_u32 s19, s19, {QBF}\nv_add_u32 v153, s19, v108")
    if pre:
        A("v_lshlrev_b32 v106, 8, v107\nv_add_u32 v106, s19, v106")
        spoll([(G, 4, 106, 0)])
    spoll([(G, 4, 153, 0), (G+4, 4, 153, 1024)])
    A(f"v_add_u32 v153, {QB}, v108\nds_write_b128 v153, v[{G}:{G+3}]\nds_write_b128 v153, v[{G+4}:{G+7}] offset:1024\ns_waitcnt lgkmcnt(0)")
    stamp(3)
    A("s_barrier\ns_barrier")
    A(f"v_lshlrev_b32 v152, 6, v0\nv_add_u32 v153, {BPART}, v152\nv_lshrrev_b32 v156, 3, v0\nv_lshlrev_b32 v157, 3, v156\nv_add_u32 v157, {BML}, v157")
    for w in range(4): A(f"ds_read_b64 v[{160+2*w}:{161+2*w}], v157 offset:{64*w}")
    for w in range(4):
        for i in range(4): A(f"ds_read_b128 v[{40+16*w+4*i}:{43+16*w+4*i}], v153 offset:{4096*w+16*i}")
    A("s_waitcnt lgkmcnt(0)\nv_max3_f32 v168, v160, v162, v164\nv_max_f32 v168, v168, v166")
    for w in range(4): A(f"v_sub_f32 v{160+2*w}, v{160+2*w}, v168\nv_mul_f32 v{160+2*w}, s72, v{160+2*w}\nv_exp_f32 v{160+2*w}, v{160+2*w}")
    A("s_nop 0\nv_mul_f32 v169, v160, v161\nv_fma_f32 v169, v162, v163, v169\nv_fma_f32 v169, v164, v165, v169\nv_fma_f32 v169, v166, v167, v169")
    for i in range(16):
        A(f"v_mul_f32 v{40+i}, v160, v{40+i}")
        for w in range(1, 4): A(f"v_fma_f32 v{40+i}, v{160+2*w}, v{40+16*w+i}, v{40+i}")
    A("s_lshl_b32 s19, s4, 2\ns_add_u32 s19, s19, s6\ns_lshl_b32 s19, s19, 6\ns_add_u32 s19, s19, s7\nv_lshl_add_u32 v156, v156, 3, s19")
    A(f"v_lshlrev_b32 v157, 3, v156\nv_add_u32 v157, {PBML}, v157\nv_lshlrev_b32 v156, 9, v156\nv_and_b32 v158, 7, v0\nv_lshl_add_u32 v156, v158, 6, v156\nv_add_u32 v156, {PBO}, v156")
    for r in list(range(40, 56)) + [168, 169]: A(f"v_min_u32 v{r}, -2, v{r}")
    for i in range(4): A(f"global_store_dwordx4 v156, v[{40+4*i}:{43+4*i}], s[66:67] offset:{16*i} sc1")
    A("global_store_dwordx2 v157, v[168:169], s[66:67] sc1")
    A(f"s_lshl_b32 s19, s78, 4\ns_add_u32 s19, s19, {PBO}\nv_add_u32 v111, s19, v108")
    A(f"s_lshr_b32 s19, s78, 2\ns_add_u32 s19, s19, {PBML}\nv_mov_b32 v109, s19")
    if pre:
        A("v_and_b32 v106, 3, v0\nv_lshl_add_u32 v106, v106, 4, v109")
        spoll([(G, 4, 106, 0)])
    spoll([(G+4*i, 4, 111, 1024*i) for i in range(4)] + [(40+4*i, 4, 109, 16*i) for i in range(4)])
    stamp(4)
    A("v_max3_f32 v56, v40, v42, v44\nv_max3_f32 v56, v56, v46, v48\nv_max3_f32 v56, v56, v50, v52\nv_max_f32 v56, v56, v54")
    for c in range(8): A(f"v_sub_f32 v{40+2*c}, v{40+2*c}, v56\nv_mul_f32 v{40+2*c}, s72, v{40+2*c}\nv_exp_f32 v{40+2*c}, v{40+2*c}")
    A("s_nop 0\nv_mul_f32 v57, v40, v41")
    for c in range(1, 8): A(f"v_fma_f32 v57, v{40+2*c}, v{41+2*c}, v57")
    A("v_rcp_f32 v57, v57")
    for i in range(4): A(f"v_cndmask_b32 v{58+i}, v{42+4*i}, v{40+4*i}, s[74:75]")
    for i in range(4):
        for k in range(4): A(f"v_mul_f32 v{G+4*i+k}, v{58+i}, v{G+4*i+k}")
    sum4_cvt()
    for k in range(4): A(f"v_mul_f32 v{G+k}, v57, v{G+k}")
    A(f"v_cvt_pk_bf16_f32 v{G}, v{G}, v{G+1}\nv_cvt_pk_bf16_f32 v{G+1}, v{G+2}, v{G+3}\nv_min_u32 v{G}, -2, v{G}\nv_min_u32 v{G+1}, -2, v{G+1}\ns_add_u32 s19, s76, {MB}\nv_add_u32 v153, s19, v144")
    A(f"s_lshr_b32 s19, s76, 5\ns_add_u32 s19, s19, {GT}\nv_mov_b32 v152, s19\ns_mov_b64 exec, s[74:75]\nglobal_store_dwordx2 v153, v[{G}:{G+1}], s[66:67] sc1\ns_mov_b64 exec, 1\nglobal_store_dwordx2 v152, v[154:155], s[66:67] sc1\ns_mov_b64 exec, -1")
    A(f"s_lshl_b32 s19, s5, 11\ns_add_u32 s17, s19, {MB}\nv_add_u32 v153, s17, v108\ns_add_u32 s17, s19, {MA}\nv_add_u32 v156, s17, v108\ns_lshl_b32 s19, s5, 6\ns_add_u32 s19, s19, {GT}\nv_and_b32 v152, 7, v0\nv_lshlrev_b32 v152, 3, v152\nv_add_u32 v157, s19, v152")
    if pre:
        A("v_and_b32 v106, 0xffffffef, v157\nv_and_b32 v106, 0xfffffff7, v106")
        spoll([(G, 4, 106, 0), (G+4, 4, 106, 16)])
    spoll([(G, 4, 153, 0), (G+4, 4, 153, 1024), (G+8, 2, 157, 0)])
    A(f"v_add_u32 v153, {OA}, v108\nv_add_u32 v152, {LG}, v152\nds_write_b128 v153, v[{G}:{G+3}] offset:2048\nds_write_b128 v153, v[{G+4}:{G+7}] offset:3072\nds_write_b64 v152, v[{G+8}:{G+9}]")
    A(f"v_lshlrev_b32 v158, 3, v0\nv_add_u32 v158, {AM}, v158\nv_mov_b32 v159, {AM}")
    A("s_lshr_b32 s19, s5, 2\ns_lshl_b32 s19, s19, 11\ns_lshl_b32 s17, s4, 8\ns_add_u32 s19, s19, s17\ns_and_b32 s17, s5, 3\ns_lshl_b32 s17, s17, 6\ns_add_u32 s19, s19, s17\nv_lshlrev_b32 v143, 3, v0\nv_add_u32 v143, s19, v143")
    A("s_waitcnt lgkmcnt(0)")
    stamp(5)
    A("s_barrier")
    stamp(6)
    for w in range(4): A(f"ds_read_b64 v[{160+2*w}:{161+2*w}], v159 offset:{544*w+512}\nds_read_b64 v[{40+2*w}:{41+2*w}], v158 offset:{544*w}")
    A("s_waitcnt lgkmcnt(0)\nv_max3_f32 v168, v160, v162, v164\nv_max_f32 v168, v168, v166")
    for w in range(4): A(f"v_sub_f32 v{160+2*w}, v{160+2*w}, v168\nv_mul_f32 v{160+2*w}, s72, v{160+2*w}\nv_exp_f32 v{160+2*w}, v{160+2*w}")
    A("s_nop 0\nv_mul_f32 v169, v160, v161\nv_fma_f32 v169, v162, v163, v169\nv_fma_f32 v169, v164, v165, v169\nv_fma_f32 v169, v166, v167, v169\nv_rcp_f32 v169, v169")
    for i in range(2):
        A(f"v_mul_f32 v{40+i}, v160, v{40+i}")
        for w in range(1, 4): A(f"v_fma_f32 v{40+i}, v{160+2*w}, v{40+2*w+i}, v{40+i}")
    A("v_mul_f32 v40, v169, v40\nv_mul_f32 v41, v169, v41\nv_cvt_pk_bf16_f32 v40, v40, v41\nv_min_u32 v40, -2, v40\nglobal_store_dword v150, v40, s[66:67] sc1")
    A("s_barrier")
    spoll([(G, 4, 156, 0), (G+4, 4, 156, 1024)])
    A(f"ds_write_b128 v153, v[{G}:{G+3}]\nds_write_b128 v153, v[{G+4}:{G+7}] offset:1024\ns_waitcnt lgkmcnt(0)\ns_barrier")
    stamp(7)
    spoll([(G+4*i, 4, 151, 1024*i) for i in range(4)])
    sum4_cvt()
    for k in range(4): A(f"v_mov_b32 v{G+16+k}, v{G+k}")
    A("s_nop 1")
    for k in range(4): A(f"v_permlane16_swap_b32 v{G+k}, v{G+16+k}")
    A("s_nop 1")
    for k in range(4): A(f"v_add_f32 v{G+k}, v{G+k}, v{G+16+k}")
    A("s_nop 1")
    for k in range(4): A(f"v_add_f32_dpp v{G+k}, v{G+k}, v{G+k} row_ror:8 row_mask:0xf bank_mask:0xf")
    A(f"v_cvt_pk_bf16_f32 v{G}, v{G}, v{G+1}\nv_cvt_pk_bf16_f32 v{G+1}, v{G+2}, v{G+3}\ns_mov_b64 exec, 0xff\nglobal_store_dwordx2 v143, v[{G}:{G+1}], s[62:63]")
    if ep: A(f"s_cmp_lg_u32 s2, 0\ns_cbranch_scc1 L_noep\ns_mov_b64 exec, 1\nv_mov_b32 v1, {EPO:#x}\nv_mov_b32 v2, s79\nglobal_store_dword v1, v2, s[66:67] sc1\nL_noep:")
    if stamps:
        A("s_memrealtime s[96:97]\ns_waitcnt lgkmcnt(0)\ns_mov_b64 exec, 1\ns_lshl_b32 s19, s2, 5\nv_mov_b32 v1, s19")
        for i, r in enumerate((80, 82, 84, 86, 88, 92, 94, 96)): A(f"v_mov_b32 v{4+i}, s{r}")
        A("global_store_dwordx4 v1, v[4:7], s[66:67]\nglobal_store_dwordx4 v1, v[8:11], s[66:67] offset:16")
    A("L_end:\ns_endpgm")
    o.append(f'.section .rodata,"a"\n.p2align 6\n.amdhsa_kernel {NAME}_kernel\n  .amdhsa_next_free_vgpr 256\n  .amdhsa_next_free_sgpr 100\n  .amdhsa_accum_offset 256')
    o.append("  .amdhsa_group_segment_fixed_size 0\n  .amdhsa_kernarg_size 112\n  .amdhsa_user_sgpr_count 2\n  .amdhsa_user_sgpr_kernarg_segment_ptr 1\n  .amdhsa_system_sgpr_workgroup_id_x 1\n.end_amdhsa_kernel")
    open(fn, "w").write("\n".join(o) + "\n")
if __name__ == "__main__":
    gen(f"cdna_kernels/{NAME}.s", hmap=0, LOOK=4, NBT=(6,2,6,2,6,2,6,2), NBT2=(4,4,4,4,4,4,4,4), W2=3)
    gen("k_st.s", stamps=True)
    for a in sys.argv[1:]:
        nm, kw = a.split(":", 1)
        gen(f"exp/{nm}.s", **eval(f"dict({kw})"))
```
